```python
import torch

def _softmax(x, axis=-1):
    return torch.softmax(x, dim=axis)
def _gelu(x):
    return torch.nn.functional.gelu(x, approximate="tanh")
def _silu(x):
    return torch.nn.functional.silu(x)
def _sigmoid(x):
    return torch.sigmoid(x)
def _layernorm(x, axis=-1, eps=1e-5):
    m = x.mean(dim=axis, keepdim=True)
    v = x.var(dim=axis, keepdim=True, unbiased=False)
    return (x - m) / torch.sqrt(v + eps)
def _scatter_add(tgt, idx, src, axis=0):
    return tgt.clone().index_add_(axis, idx, src)
def _segment_sum(src, seg, n):
    out = torch.zeros((n,) + src.shape[1:], dtype=src.dtype)
    return out.index_add_(0, seg, src)
def _pad(x, pw):
    flat = tuple(v for pair in reversed(pw) for v in pair)
    return torch.nn.functional.pad(x, flat)

kernel_name = 'recurrent_scan__linear_kernel_hedgehog__glu_gated_reglu__prompt'

def setup_inputs():

    _w = (lambda a: (lambda t: t.to(torch.bfloat16) if t.is_floating_point() else t)(torch.as_tensor(a)))
    def _A_setup():
        B, S, D, H = 1, 2048, 512, 32
        Dh = D // H
        return {
            "x": _w((lambda *s: torch.randn(*s, dtype=torch.bfloat16) * 0.05)(B, S, D)),
            "wqkv": _w((lambda *s: torch.randn(*s, dtype=torch.bfloat16) * 0.8)(D, 3 * D)),
            "w_phi": _w((lambda *s: torch.randn(*s, dtype=torch.bfloat16) * 0.8)(H, Dh, Dh) * (Dh ** -0.5)),
            "wo": _w((lambda *s: torch.randn(*s, dtype=torch.bfloat16) * 0.8)(D, D)),
        }
    _A_in = _A_setup()

    def _B_setup():
        B, S, D, F = 1, 2048, 512, 1376
        return {
            "x": _w((lambda *s: torch.randn(*s, dtype=torch.bfloat16) * 0.05)(B, S, D)),
            "W_gate": _w((lambda *s: torch.randn(*s, dtype=torch.bfloat16) * 0.2)(D, F) * (2.0 / D) ** 0.5),
            "W_up": _w((lambda *s: torch.randn(*s, dtype=torch.bfloat16) * 0.2)(D, F) * (2.0 / D) ** 0.5),
            "W_down": _w((lambda *s: torch.randn(*s, dtype=torch.bfloat16) * 0.2)(F, D) * (1.0 / F) ** 0.5),
        }
    _B_in = _B_setup()

    return {
        "A_x": _A_in["x"],
        "A_wqkv": _A_in["wqkv"],
        "A_w_phi": _A_in["w_phi"],
        "A_wo": _A_in["wo"],
        "B_x": _B_in["x"],
        "B_W_gate": _B_in["W_gate"],
        "B_W_up": _B_in["W_up"],
        "B_W_down": _B_in["W_down"],
    }

def reference(A_x, A_wqkv, A_w_phi, A_wo, B_x, B_W_gate, B_W_up, B_W_down):
    def _A_ref(x, wqkv, w_phi, wo):
        B, S, D = x.shape
        H = 32; Dh = D // H
        qkv = (lambda x, *d: x.permute(*d))((x @ wqkv).reshape(B, S, 3, H, Dh), 2, 0, 3, 1, 4)
        q, k, v = qkv[0], qkv[1], qkv[2]
        pq = torch.einsum("bhsd,hdf->bhsf", q, w_phi)
        pk = torch.einsum("bhsd,hdf->bhsf", k, w_phi)
        phi_q = torch.concatenate([_softmax(pq, axis=-1), _softmax(-pq, axis=-1)], axis=-1)
        phi_k = torch.concatenate([_softmax(pk, axis=-1), _softmax(-pk, axis=-1)], axis=-1)
        kv = torch.einsum("bhsf,bhsd->bhfd", phi_k, v)
        z  = torch.einsum("bhsf->bhf", phi_k)
        num = torch.einsum("bhqf,bhfd->bhqd", phi_q, kv)
        den = torch.einsum("bhqf,bhf->bhq", phi_q, z)[..., None] + 1e-6
        o = num / den
        return (lambda x, *d: x.permute(*d))(o, 0, 2, 1, 3).reshape(B, S, D) @ wo

    def _B_ref(x, W_gate, W_up, W_down):
        gate = torch.einsum("bsd,df->bsf", x, W_gate)
        up = torch.einsum("bsd,df->bsf", x, W_up)
        gate = gate * (lambda x, dt: x.to(dt))(gate > 0, gate.dtype)
        h = gate * up
        return torch.einsum("bsf,fd->bsd", h, W_down)

    x = A_x
    xn = _layernorm(x, axis=-1)
    s = _A_ref(xn, A_wqkv, A_w_phi, A_wo)
    g = _silu(_B_ref(xn, B_W_gate, B_W_up, B_W_down))
    return x + s * g
```

```python
import re

class Reg:
    __slots__ = ("k", "n", "c")
    def __init__(self, k, n, c=1):
        self.k, self.n, self.c = k, n, c
    def __getitem__(self, i):
        if isinstance(i, slice):
            a = i.start or 0
            b = self.c if i.stop is None else i.stop
            assert 0 <= a < b <= self.c, (self, i)
            return Reg(self.k, self.n + a, b - a)
        assert 0 <= i < self.c, (self, i)
        return Reg(self.k, self.n + i, 1)
    def regs(self):
        return [f"{self.k}{self.n + i}" for i in range(self.c)]
    def __str__(self):
        if self.c == 1:
            return f"{self.k}{self.n}"
        return f"{self.k}[{self.n}:{self.n + self.c - 1}]"
    __repr__ = __str__

def V(n, c=1): return Reg("v", n, c)
def A(n, c=1): return Reg("a", n, c)
def S(n, c=1): return Reg("s", n, c)

class Special:
    def __init__(self, name, regs): self.name, self._r = name, regs
    def regs(self): return self._r
    def __str__(self): return self.name
VCC = Special("vcc", ["vcc"])
M0 = Special("m0", ["m0"])
EXEC = Special("exec", ["exec"])

def fmt(x):
    if isinstance(x, (Reg, Special)): return str(x)
    if isinstance(x, float):
        import struct
        if x in (0.0, 0.5, 1.0, 2.0, 4.0, -0.5, -1.0, -2.0, -4.0): return repr(x)
        return "0x%08x" % struct.unpack("<I", struct.pack("<f", x))[0]
    if isinstance(x, int):
        if -16 <= x <= 64: return str(x)
        return "0x%x" % (x & 0xffffffff)
    return str(x)

def regs_of(x):
    if isinstance(x, (Reg, Special)): return x.regs()
    if isinstance(x, Neg): return regs_of(x.x)
    return []

class Neg:
    def __init__(self, x): self.x = x
    def __str__(self): return "-" + fmt(self.x)

TRANS = ("v_exp_f32", "v_log_f32", "v_rcp_f32", "v_rsq_f32", "v_sqrt_f32")

class Op:
    __slots__ = ("text", "kind", "defs", "uses", "tag", "cond", "srcc", "srcab", "after", "cost", "n", "skip")
    def __init__(self, text, kind, defs=(), uses=(), tag=None, cond=False, srcc=(), srcab=(), cost=1):
        self.text, self.kind = text, kind
        self.defs, self.uses = set(defs), set(uses)
        self.tag, self.cond = tag, cond
        self.srcc, self.srcab = set(srcc), set(srcab)
        self.after = 0
        self.cost = cost
        self.n = None
        self.skip = False
    def __repr__(self): return self.text

class Stream:
    def __init__(self):
        self.ops = []
    def add(self, op):
        self.ops.append(op); return op
    def extend(self, other):
        self.ops.extend(other.ops if isinstance(other, Stream) else other)
    def v(self, name, dst, *srcs, mods="", rmw=False):
        kind = "trans" if name in TRANS else "valu"
        defs = regs_of(dst)
        uses = [r for s in srcs for r in regs_of(s)]
        if rmw or name.startswith("v_fmac") or name.startswith("v_dot2c"): uses += defs
        if name.startswith("v_cndmask") and len(srcs) == 2:
            uses.append("vcc"); txt = f"{name} {fmt(dst)}, " + ", ".join(fmt(s) for s in srcs) + ", vcc"
        else:
            txt = f"{name} {fmt(dst)}, " + ", ".join(fmt(s) for s in srcs)
        if mods: txt += " " + mods
        return self.add(Op(txt, kind, defs, uses, cost=2 if kind == "trans" else 1))
    def swap32(self, a, b):
        r = regs_of(a) + regs_of(b)
        return self.add(Op(f"v_permlane32_swap_b32 {a}, {b}", "perm", r, r))
    def readfirstlane(self, sd, vs):
        return self.add(Op(f"v_readfirstlane_b32 {sd}, {vs}", "rfl", regs_of(sd), regs_of(vs)))
    def accw(self, ad, vs):
        return self.add(Op(f"v_accvgpr_write_b32 {ad}, {fmt(vs)}", "valu", regs_of(ad), regs_of(vs)))
    def accr(self, vd, a):
        return self.add(Op(f"v_accvgpr_read_b32 {vd}, {a}", "valu", regs_of(vd), regs_of(a)))
    def mfma(self, d, a, b, c, name="v_mfma_f32_32x32x16_bf16"):
        cr = regs_of(c)
        op = Op(f"{name} {d}, {a}, {b}, {fmt(c)}", "mfma", regs_of(d), regs_of(a) + regs_of(b) + cr,
                srcc=cr, srcab=regs_of(a) + regs_of(b))
        return self.add(op)
    def s(self, name, dst, *srcs, nodst=False):
        if nodst:
            ops = (dst,) + srcs
            txt = f"{name} " + ", ".join(fmt(s) for s in ops)
            return self.add(Op(txt, "salu", ["scc"], [r for x in ops for r in regs_of(x)]))
        defs = regs_of(dst)
        uses = [r for x in srcs for r in regs_of(x)]
        txt = f"{name} {fmt(dst)}, " + ", ".join(fmt(s) for s in srcs)
        if not name.startswith(("s_mov", "s_cselect", "s_mul_i32", "s_getreg", "s_getpc")): defs = defs + ["scc"]
        if name.startswith(("s_cselect", "s_addc", "s_subb")): uses.append("scc")
        return self.add(Op(txt.rstrip(", "), "salu", defs, uses))
    def cmp(self, name, a, b):
        return self.add(Op(f"{name} {fmt(a)}, {fmt(b)}", "salu", ["scc"], regs_of(a) + regs_of(b)))
    def dsr(self, name, dst, addr, off=0):
        assert 0 <= off <= 65535, off
        return self.add(Op(f"{name} {dst}, {addr} offset:{off}", "dsr", regs_of(dst), regs_of(addr)))
    def dsw(self, name, addr, src, off=0, tag=None):
        assert 0 <= off <= 65535, off
        return self.add(Op(f"{name} {addr}, {src} offset:{off}", "dsw", [], regs_of(addr) + regs_of(src), tag=tag))
    def bload(self, name, dst, voff, srd, soff, off=0, flags="", tag=None, cond=False):
        assert 0 <= off <= 4095
        t = f"{name} {dst}, {voff}, {srd}, {fmt(soff)} offen" + (f" offset:{off}" if off else "") + (" " + flags if flags else "")
        return self.add(Op(t, "vld", regs_of(dst), regs_of(voff) + regs_of(srd) + regs_of(soff), tag=tag, cond=cond))
    def bstore(self, name, src, voff, srd, soff, off=0, flags="", tag=None, cond=False):
        assert 0 <= off <= 4095
        t = f"{name} {src}, {voff}, {srd}, {fmt(soff)} offen" + (f" offset:{off}" if off else "") + (" " + flags if flags else "")
        wide = name.endswith(("x3", "x4"))
        return self.add(Op(t, "vstw" if wide else "vst", [], regs_of(src) + regs_of(voff) + regs_of(srd) + regs_of(soff), tag=tag, cond=cond,
                           srcc=regs_of(src)))
    def dma(self, voff, srd, soff, off=0, flags="", tag=None, cond=False):
        assert 0 <= off <= 4095
        t = f"buffer_load_dwordx4 {voff}, {srd}, {fmt(soff)} offen" + (f" offset:{off}" if off else "") + (" " + flags if flags else "") + " lds"
        return self.add(Op(t, "dma", [], regs_of(voff) + regs_of(srd) + regs_of(soff) + ["m0"], tag=tag, cond=cond))
    def waitvm(self, tag):
        return self.add(Op("", "waitvm", tag=tag, cost=1))
    def waitvm_all(self):
        return self.add(Op("s_waitcnt vmcnt(0)", "drainvm"))
    def waitlds(self, tag=None):
        return self.add(Op("", "waitlds", tag=tag))
    def barrier(self):
        return self.add(Op("s_barrier", "barrier"))
    def raw(self, text, kind="salu", defs=(), uses=()):
        return self.add(Op(text, kind, defs, uses))
    def label(self, name):
        return self.add(Op(name + ":", "label", cost=0))
    def branch(self, name, target):
        return self.add(Op(f"{name} {target}", "branch", [], ["scc"] if "scc" in name else (["vcc"] if "vcc" in name else [])))
    def nop(self, n):
        return self.add(Op(f"s_nop {n}", "nop", cost=n + 1))
    def comment(self, t):
        return self.add(Op("; " + t, "comment", cost=0))


def resolve_waits(ops):
    out = []
    vmq = []
    ldq = []
    def emit_wait(vm=None, lg=None):
        parts = []
        if vm is not None: parts.append(f"vmcnt({min(vm, 63)})")
        if lg is not None: parts.append(f"lgkmcnt({min(lg, 15)})")
        out.append(Op("s_waitcnt " + " ".join(parts), "wait"))
    for op in ops:
        k = op.kind
        if k in ("comment", "label"):
            out.append(op); continue
        need_vm = -1; need_ld = -1
        touched = op.uses | op.defs
        if k == "waitvm":
            for i, e in enumerate(vmq):
                if e.tag == op.tag or (isinstance(op.tag, (list, tuple, set)) and e.tag in op.tag): need_vm = i
        elif k == "waitlds":
            for i, e in enumerate(ldq):
                if op.tag is None or e.tag == op.tag: need_ld = i
        else:
            for i, e in enumerate(vmq):
                if e.kind == "vld" and (e.defs & touched): need_vm = i
            for i, e in enumerate(ldq):
                if e.kind == "dsr" and (e.defs & touched): need_ld = i
        vm = lg = None
        if need_vm >= 0:
            vm = sum(1 for e in vmq[need_vm + 1:] if not e.cond)
            if vm > 63:
                vm = 63
            vmq = vmq[need_vm + 1:]
        if need_ld >= 0:
            lg = len(ldq) - need_ld - 1
            if lg > 15:
                lg = 15
                ldq = ldq[len(ldq) - 15:]
            else:
                ldq = ldq[need_ld + 1:]
        if vm is not None or lg is not None:
            emit_wait(vm, lg)
        if k in ("waitvm", "waitlds"):
            continue
        if k == "drainvm":
            vmq = []
        if k == "drainall":
            vmq = []; ldq = []
        if k == "smemwait":
            ldq = []
        out.append(op)
        if k in ("vld", "vst", "vstw", "dma"):
            vmq.append(op)
            assert sum(1 for e in vmq) <= 63, "vmcnt overflow (more than 63 outstanding)"
        if k in ("dsr", "dsw"):
            ldq.append(op)
    return out


def states(op):
    if op.kind in ("comment", "label") or op.skip: return 0
    if op.kind == "nop": return op.cost
    return 1

VALUISH = ("valu", "trans", "perm", "rfl")

def need_states(p, c):
    n = 0
    pk, ck = p.kind, c.kind
    vdefs = {r for r in p.defs if r[0] in "va" and r != "vcc"}
    if pk in VALUISH:
        if ck == "mfma" and (vdefs & c.uses): n = max(n, 2)
        if ck == "perm" and (vdefs & c.uses): n = max(n, 2)
        if ck == "rfl" and (vdefs & c.uses): n = max(n, 1)
        if pk == "trans" and ck in VALUISH + ("mfma",) and (vdefs & c.uses): n = max(n, 1 if ck != "mfma" else 2)
        sdefs = {r for r in p.defs if r[0] == "s" or r == "vcc"}
        if sdefs:
            if ck in VALUISH and (sdefs & c.uses): n = max(n, 2)
            if ck in ("vld", "vst", "vstw", "dma") and (sdefs & c.uses): n = max(n, 5)
            if ck in ("salu", "branch") and (sdefs & c.uses): n = max(n, 4)
    if pk == "mfma":
        if ck == "mfma":
            if p.defs & c.srcab: n = max(n, 12)
            if p.defs & c.srcc:
                n = max(n, 0 if (p.defs == c.srcc) else 10)
            elif p.defs & c.defs and p.defs != c.defs: n = max(n, 10)
            if (p.defs & c.defs) and not (p.defs == c.srcc): n = max(n, 10)
        elif ck in VALUISH + ("vld", "vst", "vstw", "dsr", "dsw", "dma"):
            if p.defs & (c.uses | c.defs): n = max(n, 12)
            if ck in VALUISH and (p.srcc & c.defs): n = max(n, 7)
            if ck in ("vld", "dsr") and (p.srcc & c.defs): n = max(n, 7)
    if pk == "vstw" and ck in VALUISH + ("dsr", "vld", "mfma") and (p.srcc & c.defs): n = max(n, 2)
    if pk == "salu" and "m0" in p.defs and ck == "dma": n = max(n, 1)
    return n

def insert_nops(ops):
    out = []
    hist = []
    for op in ops:
        if op.kind in ("comment",):
            out.append(op); continue
        if op.kind == "label":
            out.append(op); continue
        need = 0
        dist = 0
        for p in reversed(out):
            if p.kind in ("comment", "label"): continue
            if dist >= 12: break
            r = need_states(p, op) - dist
            if r > need: need = r
            dist += states(p)
        while need > 0:
            n = min(need, 16)
            out.append(Op(f"s_nop {n - 1}", "nop", cost=n))
            need -= n
        out.append(op)
    return out

def finalize(stream):
    ops = stream.ops if isinstance(stream, Stream) else stream
    ops = flatten(ops)
    ops = resolve_waits(ops)
    ops = insert_nops(ops)
    return ops

def to_text(ops):
    lines = []
    for o in ops:
        if o.kind == "label": lines.append(o.text)
        else: lines.append(o.text)
    return "\n".join(lines) + "\n"


def ready(op, hist, lds_dist=10):
    dist = 0
    for p in reversed(hist[-40:]):
        if p.kind in ("comment", "label"): continue
        if dist < 13 and need_states(p, op) > dist: return False
        if p.kind == "dsr" and dist < lds_dist and (p.defs & (op.uses | op.defs)): return False
        dist += states(p)
        if dist >= 16: break
    return True

def interleave(gaps, fillers, budget=6, out=None):
    out = [] if out is None else out
    ptr = [0] * len(fillers)
    def try_fill(gi, room):
        while room > 0:
            placed = False
            for fi, f in enumerate(fillers):
                if ptr[fi] >= len(f): continue
                op = f[ptr[fi]]
                if op.kind == "comment":
                    out.append(op); ptr[fi] += 1; placed = True; break
                if op.after > gi: continue
                if op.cost > room and not (op.cost == 2 and room == 1): continue
                if not ready(op, out): continue
                out.append(op); ptr[fi] += 1
                placed = True
                if op.kind == "mfma":
                    room = budget
                else:
                    room -= op.cost
                break
            if not placed: break
    for gi, g in enumerate(gaps):
        used = 0
        for op in g:
            out.append(op)
            if op.kind not in ("mfma", "comment", "label"): used += op.cost
        try_fill(gi, budget - used)
    left = [f[ptr[i]:] for i, f in enumerate(fillers)]
    return out, left

def interleave2(gaps, fillers, budget, budgets):
    out = []
    ptr = [0] * len(fillers)
    for gi, g in enumerate(gaps):
        b = budgets.get(gi, budget)
        sub = [f[ptr[i]:] for i, f in enumerate(fillers)]
        for f in sub:
            pass
        o, left = _one_gap(g, gi, sub, b, out, force=(gi in budgets))
        for i in range(len(fillers)): ptr[i] = len(fillers[i]) - len(left[i])
    return out, [f[ptr[i]:] for i, f in enumerate(fillers)]

def _one_gap(g, gi, fillers, budget, out, force=False):
    ptr = [0] * len(fillers)
    used = 0
    for op in g:
        out.append(op)
        if op.kind not in ("mfma", "comment", "label"): used += op.cost
    room = budget - used
    while room > 0:
        placed = False
        for fi, f in enumerate(fillers):
            if ptr[fi] >= len(f): continue
            op = f[ptr[fi]]
            if op.kind in ("comment", "label"):
                out.append(op); ptr[fi] += 1; placed = True; break
            if op.kind == "delay":
                ptr[fi] += 1
                if ptr[fi] < len(f): f[ptr[fi]].after = max(f[ptr[fi]].after, gi + op.cost)
                placed = True; break
            if op.after > gi + (1 if force else 0): continue
            if op.kind == "block":
                if not force and not ready(op.tag[0], out): continue
                out.extend(op.tag); ptr[fi] += 1; placed = True
                room -= op.cost
                break
            if op.cost > room and not (op.cost == 2 and room == 1): continue
            if not force and not ready(op, out): continue
            out.append(op); ptr[fi] += 1
            placed = True
            if op.kind == "mfma" and not force: room = 5
            else: room -= op.cost
            break
        if not placed: break
    return out, [f[ptr[i]:] for i, f in enumerate(fillers)]


def Block(ops, cost=None):
    ops = list(ops)
    b = Op("", "block", tag=ops, cost=cost if cost is not None else min(len(ops), 4))
    return b

def Delay(n):
    return Op("", "delay", cost=n)

def flatten(ops):
    out = []
    for o in ops:
        if o.kind == "block": out.extend(flatten(o.tag))
        elif o.kind == "delay": continue
        else: out.append(o)
    return out
```

```python
import sys, math
from asmgen import *

KNAME = "recurrent_scan__linear_kernel_hedgehog__glu_gated_reglu__prompt_kernel"
LOG2E = 1.4426950408889634

WS_H = 0
WS_O = 0x560000
WS_KV = 0x760000
WS_FL = 0x780000
WS_SIZE = 0x782000
FL_H, FL_O, FL_KV = 0, 16 * 128, 32 * 128
SPIN_LIMIT = 200000

sKA = S(0, 2); sWG = S(2); sT0 = S(3)
sPTR = S(4, 16)
sPTR2 = S(20, 4)
sPTR3 = S(24, 2)
rX, rQKV, rPHI, rWO, rG, rU, rD, rOUT, rDBG, rWS = [S(28 + 4 * i, 4) for i in range(10)]
sWave, sRB, sJ, sType, sHalf, sC64 = S(68), S(69), S(70), S(71), S(72), S(73)
sWl = S(74)
sXb0, sXb1 = S(75), S(76)
sSo, sSo2 = S(77), S(78)
sCol1 = S(79)
sColG = S(80)
sT1, sT2, sT3 = S(81), S(82), S(83)
sCnt = S(84)
sHb = S(85)
sNst = S(86)
sColV = S(87)
sPb0, sPb1 = S(88), S(89)
sHl = S(90)
sOl = S(91)
sKVb = S(92)
sOutb = S(93)
sMask = [S(4 + 2 * i, 2) for i in range(6)]
sEx = S(16, 2)

R = [i * 32768 for i in range(5)]
MISC = 144 * 1024

aX = A(0, 128)
aW = A(128, 32)
aPHI = A(160, 16)
NFR = 8
PD = 4


class Gen:
    def __init__(self, debug=None):
        self.debug = debug
        self.st = Stream()
        self.lab = 0

    def newlabel(self, p):
        self.lab += 1
        return f"L_{p}_{self.lab}"

    def srd(self, st, r, ptr, size):
        st.s("s_mov_b32", r[0], ptr[0]); st.s("s_mov_b32", r[1], ptr[1])
        st.s("s_mov_b32", r[2], size); st.s("s_mov_b32", r[3], 0x20000)

    def poll(self, st, soff, target, vaddr, vt, srd=None, wave0=True):
        srd = srd or rWS
        lo, le = self.newlabel("poll"), self.newlabel("pdone")
        n0 = len(st.ops)
        if wave0:
            st.cmp("s_cmp_lg_u32", sWave, 0); st.branch("s_cbranch_scc1", le)
        n1 = len(st.ops)
        st.s("s_mov_b32", sCnt, 0)
        st.label(lo)
        st.raw(f"buffer_load_dword {vt}, {vaddr}, {srd}, {soff} offen sc1", "salu", [], [])
        st.raw("s_waitcnt vmcnt(0)", "wait")
        st.readfirstlane(sT1, vt)
        st.cmp("s_cmp_ge_u32", sT1, target); st.branch("s_cbranch_scc1", le)
        st.s("s_add_u32", sCnt, sCnt, 1); st.cmp("s_cmp_lt_u32", sCnt, SPIN_LIMIT); st.branch("s_cbranch_scc1", lo)
        if wave0:
            for o in st.ops[n1:]: o.skip = True
        st.label(le)

    def prologue(self):
        st = self.st
        st.cmp("s_cmp_ge_u32", sWG, 256); st.branch("s_cbranch_scc1", "L_end")
        st.raw(f"s_load_dwordx16 {sPTR}, {sKA}, 0", "salu", sPTR.regs(), [])
        st.raw(f"s_load_dwordx4 {sPTR2}, {sKA}, 64", "salu", sPTR2.regs(), [])
        st.raw(f"s_load_dwordx2 {sPTR3}, {sKA}, 80", "salu", sPTR3.regs(), [])
        vL = V(1)
        st.v("v_and_b32", vL, 63, V(0))
        st.v("v_lshrrev_b32", V(2), 6, V(0))
        st.readfirstlane(sWave, V(2))
        st.s("s_and_b32", sT1, sWG, 7)
        st.s("s_lshr_b32", sT2, sWG, 3)
        st.s("s_lshr_b32", sRB, sT1, 1); st.s("s_lshl_b32", sRB, sRB, 2)
        st.s("s_lshr_b32", sT3, sT2, 3); st.s("s_add_u32", sRB, sRB, sT3)
        st.s("s_and_b32", sHalf, sT1, 1)
        st.s("s_and_b32", sC64, sT2, 7)
        st.s("s_lshr_b32", sType, sC64, 2)
        st.s("s_and_b32", sT3, sC64, 3); st.s("s_lshl_b32", sJ, sHalf, 2); st.s("s_add_u32", sJ, sJ, sT3)
        vx = [V(4 + q) for q in range(4)]
        lr, pos, tq, t = V(8), V(9), V(10), V(11)
        st.v("v_lshrrev_b32", lr, 4, vL); st.v("v_and_b32", pos, 15, vL)
        for q in range(4):
            st.v("v_add_u32", tq, 4 * q, lr)
            st.v("v_xor_b32", t, pos, tq); st.v("v_lshlrev_b32", t, 4, t)
            st.v("v_lshlrev_b32", tq, 10, tq); st.v("v_add_u32", vx[q], tq, t)
        st.s("s_lshl_b32", sWl, sWave, 10)
        st.s("s_lshl_b32", sXb0, sRB, 17); st.s("s_lshl_b32", sT1, sWave, 15); st.s("s_add_u32", sXb0, sXb0, sT1)
        st.s("s_add_u32", sXb1, sXb0, 16384)
        st.raw("s_waitcnt lgkmcnt(0)", "smemwait")
        self.srd(st, rX, sPTR[0:2], 2097152)
        for sl in range(4):
            for tg in range(8):
                st.s("s_add_u32", M0, sT1, sl * 8192 + tg * 1024 - sl * 256)
                st.dma(vx[tg & 3], rX, sXb0 if tg < 4 else sXb1, off=sl * 256, tag=("x", sl))
        self.srd(st, rWS, sPTR3, WS_SIZE)
        self.srd(st, rQKV, sPTR[2:4], 512 * 3072)
        self.srd(st, rPHI, sPTR[4:6], 16384)
        self.srd(st, rWO, sPTR[6:8], 512 * 1024)
        self.srd(st, rG, sPTR[10:12], 512 * 2752)
        self.srd(st, rU, sPTR[12:14], 512 * 2752)
        self.srd(st, rD, sPTR[14:16], 1376 * 1024)
        self.srd(st, rOUT, sPTR2[0:2], 2097152)
        self.srd(st, rDBG, sPTR2[2:4], 256)
        lz = self.newlabel("nozero")
        st.cmp("s_cmp_ge_u32", sWG, 16); st.branch("s_cbranch_scc1", lz)
        n0 = len(st.ops)
        z = V(12, 4)
        for i in range(4): st.v("v_mov_b32", z[i], 0)
        st.v("v_lshlrev_b32", V(16), 4, vL)
        st.s("s_lshl_b32", sT2, sWG, 13); st.s("s_lshl_b32", sT3, sWave, 11); st.s("s_add_u32", sT2, sT2, sT3)
        st.s("s_add_u32", sT2, sT2, WS_KV)
        st.bstore("buffer_store_dwordx4", z, V(16), rWS, sT2, flags="sc1", cond=True)
        st.bstore("buffer_store_dwordx4", z, V(16), rWS, sT2, off=1024, flags="sc1", cond=True)
        st.v("v_lshrrev_b32", V(17), 3, vL); st.v("v_min_u32", V(17), 2, V(17)); st.v("v_lshlrev_b32", V(17), 11, V(17))
        st.v("v_and_b32", V(18), 7, vL); st.v("v_lshlrev_b32", V(18), 4, V(18)); st.v("v_add_u32", V(17), V(17), V(18))
        st.s("s_lshl_b32", sT2, sWG, 7); st.s("s_add_u32", sT2, sT2, WS_FL)
        st.bstore("buffer_store_dwordx4", z, V(17), rWS, sT2, flags="sc1", cond=True)
        for o in st.ops[n0:]: o.skip = True
        st.label(lz)
        st.s("s_lshl_b32", sT2, sJ, 7)
        st.cmp("s_cmp_eq_u32", sType, 0); st.s("s_cselect_b32", sT3, 1024, 0)
        st.s("s_add_u32", sCol1, sT2, sT3); st.s("s_add_u32", sColV, sT2, 2048)
        self.vWq = [V(20), V(21)]
        r8, ps, a, b = V(8), V(9), V(10), V(11)
        st.v("v_lshrrev_b32", r8, 3, vL); st.v("v_and_b32", ps, 7, vL)
        st.v("v_bfe_u32", a, r8, 1, 1); st.v("v_lshlrev_b32", a, 2, a); st.v("v_xor_b32", a, a, ps); st.v("v_lshlrev_b32", a, 4, a)
        st.s("s_lshl_b32", sT2, sWave, 3)
        st.v("v_add_u32", b, sT2, r8)
        st.s("s_mov_b32", sT3, 3072)
        st.v("v_mul_lo_u32", b, b, sT3)
        st.v("v_add_u32", self.vWq[0], a, b)
        st.v("v_add_u32", self.vWq[1], 32 * 3072, self.vWq[0])
        for s in range(3):
            self.dma128(st, rQKV, self.vWq, sCol1, s * 64 * 3072, R[4] + s * 8192, ("p1", s))
        st.s("s_and_b32", sT2, sWave, 1); st.s("s_lshl_b32", sT2, sT2, 10)
        st.s("s_add_u32", M0, sT2, R[4] + 24576)
        st.s("s_lshl_b32", sT3, sJ, 11); st.s("s_add_u32", sT3, sT3, sT2)
        st.v("v_lshlrev_b32", V(16), 4, vL)
        st.dma(V(16), rPHI, sT3, tag="phi")
        st.raw("s_getpc_b64 s[18:19]", "salu", ["s18", "s19"], [])
        st.label("L_pc")
        st.raw(f"s_sub_u32 s18, s18, L_pc-{KNAME}", "salu", ["s18", "scc"], ["s18"])
        st.raw("s_subb_u32 s19, s19, 0", "salu", ["s19", "scc"], ["s19", "scc"])
        st.s("s_lshr_b32", sT2, sWG, 3); st.s("s_lshl_b32", sT2, sT2, 11)
        st.v("v_lshlrev_b32", V(16), 3, V(0)); st.v("v_add_u32", V(16), sT2, V(16))
        st.raw(f"s_mov_b32 {sT2}, L_codeend-{KNAME}-8", "salu", sT2.regs(), [])
        st.v("v_min_u32", V(16), sT2, V(16))
        st.add(Op("global_load_dwordx2 v[254:255], v16, s[18:19]", "vld", ["v254", "v255"], ["v16", "s18", "s19"]))

    def dma128(self, st, srd, voffs, sbase, const, ldsaddr, tag):
        st.s("s_add_u32", sSo, sbase, const)
        for ii in range(2):
            st.s("s_add_u32", M0, sWl, ldsaddr + ii * 4096)
            st.dma(voffs[ii], srd, sSo, tag=tag)

    def xstats(self):
        st = self.st
        vL = V(1)
        t, hf, tt = V(8), V(9), V(10)
        st.v("v_and_b32", t, 31, vL); st.v("v_lshrrev_b32", hf, 5, vL); st.v("v_and_b32", tt, 15, t)
        vxr = [V(24 + a) for a in range(8)]
        st.v("v_lshlrev_b32", V(11), 8, t)
        st.s("s_lshl_b32", sT1, sWave, 15)
        st.v("v_add_u32", V(11), sT1, V(11))
        for a in range(8):
            st.v("v_add_u32", V(12), 2 * a, hf); st.v("v_xor_b32", V(12), V(12), tt)
            st.v("v_lshlrev_b32", V(12), 4, V(12)); st.v("v_add_u32", vxr[a], V(11), V(12))
        self.vOnes = V(32, 4); self.vSel = V(36, 8)
        for i in range(4): st.v("v_mov_b32", self.vOnes[i], 0x3f803f80)
        st.v("v_lshlrev_b32", V(12), 2, hf); st.v("v_sub_u32", V(12), t, V(12))
        st.v("v_mov_b32", V(14), 0x3f80); st.v("v_mov_b32", V(15), 0x3f800000)
        for ab in range(2):
            for q in range(4):
                row0 = 16 * ab + 8 * (q >> 1) + 2 * (q & 1)
                d = self.vSel[4 * ab + q]
                st.v("v_cmp_eq_u32", VCC, row0, V(12))
                st.v("v_cndmask_b32", d, 0, V(14))
                st.v("v_cmp_eq_u32", VCC, row0 + 1, V(12))
                st.v("v_cndmask_b32", d, d, V(15))
        for i in range(5):
            st.v("v_and_b32", V(13), 1 << i, t)
            st.v("v_cmp_ne_u32", sMask[i], 0, V(13))
        st.v("v_mov_b32", V(14), 0); st.v("v_mov_b32", V(15), 0)
        st.v("v_mov_b32", V(13), R[4] + 26624)
        st.dsw("ds_write_b64", V(13), V(14, 2))
        self.vD1 = V(48, 16); self.vD2 = V(64, 16)
        for sl in range(4):
            st.waitvm(("x", sl))
            for a in range(8):
                s = sl * 8 + a
                st.dsr("ds_read_b128", aX[4 * s:4 * s + 4], vxr[a], off=sl * 8192)
            for a in range(8):
                s = sl * 8 + a
                f = aX[4 * s:4 * s + 4]
                st.mfma(self.vD1, self.vOnes, f, self.vD1 if s else 0)
                st.mfma(self.vD2, f, f, self.vD2 if s else 0)
        st.waitvm("phi")
        st.waitlds()
        st.barrier()

    def stats_final(self, st):
        D1, D2 = self.vD1, self.vD2
        self.vRstd, self.vRs, self.vR2 = V(2), V(3), V(4)
        for r in range(16): st.v("v_mul_f32", D1[r], -1.0 / 512, D1[r])
        E = V(80, 8)
        for k in range(8): st.v("v_cndmask_b32", E[k], D2[2 * k], D2[2 * k + 1], sMask[0])
        for k in range(4): st.v("v_cndmask_b32", E[k], E[2 * k], E[2 * k + 1], sMask[1])
        for k in range(2): st.v("v_cndmask_b32", E[k], E[2 * k], E[2 * k + 1], sMask[3])
        st.v("v_cndmask_b32", E[0], E[0], E[1], sMask[4])
        st.v("v_mov_b32", E[1], E[0])
        st.swap32(E[0], E[1])
        st.v("v_cndmask_b32", E[0], E[0], E[1], sMask[2])
        st.v("v_mul_f32", E[1], D1[0], D1[0])
        st.v("v_mul_f32", E[0], 1.0 / 512, E[0])
        st.v("v_sub_f32", E[0], E[0], E[1])
        st.v("v_max_f32", E[0], 0, E[0])
        st.v("v_add_f32", E[0], 1e-5, E[0])
        st.v("v_rsq_f32", self.vRstd, E[0])
        st.v("v_mul_f32", self.vRs, LOG2E, self.vRstd)
        st.v("v_mul_f32", self.vR2, self.vRstd, self.vRstd)

    def centering(self, st):
        C = self.vD1
        Ds = [V(64, 16), V(80, 16), V(96, 16)]
        T = V(112, 8)
        def mfa(u): st.mfma(Ds[u % 3], self.vSel[0:4], aX[8 * u:8 * u + 4], C)
        def mfb(u): st.mfma(Ds[u % 3], self.vSel[4:8], aX[8 * u + 4:8 * u + 8], Ds[u % 3])
        mfa(0); mfb(0); mfa(1); mfb(1)
        for u in range(16):
            D = Ds[u % 3]
            if u + 2 < 16: mfa(u + 2)
            for r in range(8): st.v("v_cvt_pk_bf16_f32", T[r], D[2 * r], D[2 * r + 1])
            if u + 2 < 16: mfb(u + 2)
            for r in range(8): st.accw(aX[8 * u + r], T[r])

    def phi_frags(self, st):
        vL = V(1)
        i16, r, cc, g16, hf = V(8), V(9), V(10), V(11), V(12)
        st.v("v_and_b32", i16, 15, vL); st.v("v_lshrrev_b32", r, 2, i16); st.v("v_and_b32", cc, 3, i16)
        st.v("v_bfe_u32", g16, vL, 4, 1); st.v("v_lshrrev_b32", hf, 5, vL)
        base = V(13)
        st.v("v_lshlrev_b32", base, 2, hf); st.v("v_add_u32", base, base, r); st.v("v_lshlrev_b32", base, 5, base)
        st.v("v_lshlrev_b32", V(14), 3, cc); st.v("v_add_u32", base, base, V(14))
        st.v("v_add_u32", base, R[4] + 24576, base)
        zaddr = V(15)
        st.v("v_mov_b32", zaddr, R[4] + 26624)
        ad = [V(16), V(17)]
        for par in range(2):
            st.v("v_cmp_eq_u32", VCC, par, g16)
            for hh in range(2):
                hd = 2 * hh + par
                for q in range(2):
                    st.v("v_add_u32", V(14), hd * 512 + q * 256, base)
                    st.v("v_cndmask_b32", ad[q], zaddr, V(14))
                    st.dsr("ds_read_b64_tr_b16", aPHI[4 * hd + 2 * q:4 * hd + 2 * q + 2], ad[q])

    def lane_bits(self, st):
        vL = V(1)
        self.b_r, self.b_cc, self.b_g, self.b_hf = V(8), V(9), V(10), V(11)
        st.v("v_and_b32", V(12), 15, vL); st.v("v_lshrrev_b32", self.b_r, 2, V(12)); st.v("v_and_b32", self.b_cc, 3, V(12))
        st.v("v_bfe_u32", self.b_g, vL, 4, 1); st.v("v_lshrrev_b32", self.b_hf, 5, vL)

    def cc_part(self, st, d, tmp):
        st.v("v_lshrrev_b32", d, 1, self.b_cc); st.v("v_lshlrev_b32", d, 4, d)
        st.v("v_and_b32", tmp, 1, self.b_cc); st.v("v_lshlrev_b32", tmp, 3, tmp); st.v("v_add_u32", d, d, tmp)

    def addr128(self, st, dst, wins, rowmul, xor_reg=None):
        a, b, t = V(12), V(13), V(14)
        self.cc_part(st, a, t)
        st.v("v_lshlrev_b32", t, 5, self.b_g); st.v("v_add_u32", a, a, t)
        st.v("v_mul_u32_u24", t, rowmul, self.b_hf); st.v("v_add_u32", t, t, self.b_r)
        st.v("v_lshlrev_b32", t, 7, t); st.v("v_add_u32", a, a, t)
        st.v("v_bfe_u32", b, self.b_r, 1, 1)
        if xor_reg is not None: st.v("v_xor_b32", b, xor_reg, b)
        for c in range(2):
            st.v("v_xor_b32", t, c, b); st.v("v_lshlrev_b32", t, 6, t)
            first = None
            for wi in wins:
                if first is None:
                    st.v("v_add_u32", dst[c][wi], a, t)
                    if wi: st.v("v_add_u32", dst[c][wi], wi * 65536, dst[c][wi])
                    first = wi
                else:
                    st.v("v_add_u32", dst[c][wi], (wi - first) * 65536, dst[c][first])

    def softmax(self, st, P, T, m):
        s = self.vRs
        mx, nm, c, d, u, w = [m[i] for i in range(6)]
        st.v("v_max3_f32", mx, P[0], P[1], P[2]); st.v("v_max3_f32", nm, Neg(P[0]), Neg(P[1]), Neg(P[2]))
        st.v("v_max3_f32", mx, mx, P[3], P[4]); st.v("v_max3_f32", nm, nm, Neg(P[3]), Neg(P[4]))
        st.v("v_max3_f32", mx, mx, P[5], P[6]); st.v("v_max3_f32", nm, nm, Neg(P[5]), Neg(P[6]))
        st.v("v_max_f32", mx, mx, P[7]); st.v("v_max_f32", nm, nm, Neg(P[7]))
        st.swap32(mx, nm)
        st.v("v_max_f32", c, mx, nm); st.v("v_mov_b32", d, c)
        st.swap32(c, d)
        st.v("v_mul_f32", u, c, s); st.v("v_mul_f32", w, d, s)
        for r in range(8):
            st.v("v_fma_f32", T[r], P[r], s, Neg(u))
            st.v("v_fma_f32", P[r], Neg(P[r]), s, Neg(w))
        for r in range(8):
            st.v("v_exp_f32", T[r], T[r]); st.v("v_exp_f32", P[r], P[r])
        st.v("v_add_f32", mx, T[0], T[1]); st.v("v_add_f32", nm, P[0], P[1])
        for r in range(2, 8):
            st.v("v_add_f32", mx, mx, T[r]); st.v("v_add_f32", nm, nm, P[r])
        st.swap32(mx, nm)
        st.v("v_add_f32", c, mx, nm); st.v("v_mov_b32", d, c)
        st.swap32(c, d)
        st.v("v_rcp_f32", u, c); st.v("v_rcp_f32", w, d)
        for r in range(8):
            st.v("v_mul_f32", T[r], T[r], u); st.v("v_mul_f32", P[r], P[r], w)
        for q in range(4): st.v("v_cvt_pk_bf16_f32", P[q], P[2 * q], P[2 * q + 1])
        for q in range(4): st.v("v_cvt_pk_bf16_f32", P[4 + q], T[2 * q], T[2 * q + 1])

    def phi_logits(self, st, acc, tmp8, c):
        for q in range(8): st.v("v_cvt_pk_bf16_f32", tmp8[q], acc[2 * q], acc[2 * q + 1])
        st.mfma(acc, aPHI[8 * c:8 * c + 4], tmp8[0:4], 0)
        st.mfma(acc, aPHI[8 * c + 4:8 * c + 8], tmp8[4:8], acc)


class Stage:
    def __init__(self, name, dma_ops, tag):
        self.name, self.dma_ops, self.tag = name, dma_ops, tag
        self.issue_after = None

class Item:
    def __init__(self, acc, xf, stage, reads, first):
        self.acc, self.xf, self.stage, self.reads, self.first = acc, xf, stage, reads, first

def build_gaps(items, pending, frag0=0, extra_at=None, dma_spacing=1, pre_barrier=None):
    n = len(items)
    gaps = [[] for _ in range(n)]
    pro = Stream()
    bar_gap = {}
    def frag(i):
        k = (frag0 + i) % NFR
        return aW[4 * k:4 * k + 4]
    def emit_reads(st, i):
        it = items[i]; f = frag(i)
        for q in range(2):
            a, off = it.reads[q]
            st.dsr("ds_read_b64_tr_b16", f[2 * q:2 * q + 2], a, off=off)
    def stage_entry(st, i):
        sg = items[i].stage
        if pre_barrier and sg.name in pre_barrier:
            st.extend(pre_barrier[sg.name])
        st.waitvm(sg.tag); st.barrier()
    seen = set()
    for i in range(min(PD, n)):
        if items[i].stage.name not in seen:
            seen.add(items[i].stage.name); stage_entry(pro, i); bar_gap[items[i].stage.name] = -1
        emit_reads(pro, i)
    for i in range(n):
        st = Stream()
        it = items[i]
        st.mfma(it.acc, frag(i), it.xf, 0 if it.first else it.acc)
        j = i + PD
        if j < n:
            if items[j].stage.name not in seen:
                seen.add(items[j].stage.name); stage_entry(st, j); bar_gap[items[j].stage.name] = i
            emit_reads(st, j)
        gaps[i] = st.ops
    nextfree = 0
    for stage, after in pending:
        g = (bar_gap[after] if after is not None else -1)
        g = max(g, nextfree, 0)
        groups = split_dma(stage.dma_ops)
        for grp in groups:
            if g >= n: g = n - 1
            gaps[g].extend(grp)
            g += dma_spacing
        nextfree = g
    return pro, gaps, bar_gap

def split_dma(ops):
    groups, cur = [], []
    for o in ops:
        cur.append(o)
        if o.kind == "dma":
            groups.append(cur); cur = []
    if cur: groups[-1].extend(cur)
    return groups


sW2 = S(94)
sKh, sI = S(95), S(96)
sOb = S(97)
sSo3 = S(98)

class Main(Gen):
    vWd = [V(233), V(234)]
    vP = [[V(235), V(236), V(237)], [V(238), V(239), V(240)]]
    vL16 = V(241)
    vZero = V(242)

    def p2_setup(self, st):
        vL = V(1)
        st.s("s_lshr_b32", sKh, sWave, 1); st.s("s_and_b32", sI, sWave, 1)
        st.s("s_lshl_b32", sW2, sWave, 11)
        st.v("v_mov_b32", V(15), sKh)
        self.addr128(st, self.vP, [0, 1, 2], 4, xor_reg=V(15))
        st.s("s_lshl_b32", sT1, sKh, 13)
        for a in range(2):
            for wi in range(3): st.v("v_add_u32", self.vP[a][wi], sT1, self.vP[a][wi])
        r8, ps, a_, b_ = V(12), V(13), V(14), V(15)
        st.v("v_lshrrev_b32", r8, 3, vL); st.v("v_and_b32", ps, 7, vL)
        st.v("v_bfe_u32", a_, r8, 1, 1); st.v("v_lshlrev_b32", a_, 2, a_); st.v("v_xor_b32", a_, a_, ps); st.v("v_lshlrev_b32", a_, 4, a_)
        st.s("s_lshl_b32", sT1, sWave, 4)
        st.v("v_add_u32", b_, sT1, r8); st.v("v_lshlrev_b32", b_, 10, b_)
        st.v("v_add_u32", self.vWd[0], a_, b_); st.v("v_add_u32", self.vWd[1], 8 * 1024, self.vWd[0])
        st.s("s_lshl_b32", sPb0, sC64, 7)
        st.v("v_lshlrev_b32", self.vL16, 4, vL)
        st.v("v_mov_b32", self.vZero, 0)
        st.s("s_lshl_b32", sT1, sRB, 2); st.s("s_lshl_b32", sT2, sHalf, 1); st.s("s_add_u32", sT1, sT1, sT2); st.s("s_add_u32", sT1, sT1, sI)
        st.s("s_mul_i32", sHl, sT1, 86); st.s("s_mul_i32", sT2, sKh, 43); st.s("s_add_u32", sHl, sHl, sT2); st.s("s_lshl_b32", sHl, sHl, 10)
        st.s("s_lshl_b32", sOl, sT1, 5); st.s("s_lshl_b32", sT2, sKh, 4); st.s("s_add_u32", sOl, sOl, sT2); st.s("s_lshl_b32", sOl, sOl, 10)
        st.s("s_add_u32", sOl, sOl, WS_O)

    def p2_stage(self, stn, sreg=None):
        sreg = sreg or sSo2
        st = Stream()
        slot = (stn % 9) * 16384
        for kh in range(2):
            if stn < 11:
                srd, const = rD, (43 * kh + 4 * stn) * 16384
            else:
                srd, const = rWO, (16 * kh + 4 * (stn - 11)) * 16384
            st.s("s_add_u32", sreg, sPb0, const)
            for hh in range(2):
                st.s("s_add_u32", M0, sW2, slot + kh * 8192 + hh * 1024)
                st.dma(self.vWd[hh], srd, sreg, tag=("p2", stn))
        return Stage(f"P{stn}", st.ops, ("p2", stn))

    def stage128(self, name, srd, sbase, const, lds):
        st = Stream(); self.dma128(st, srd, self.vWq, sbase, const, lds, name)
        return Stage(name, st.ops, name)

    def issue(self, st, stage):
        st.extend(stage.dma_ops)

    def gate_add(self, st):
        l = self.newlabel("nogate")
        st.cmp("s_cmp_ge_u32", sWG, 16); st.branch("s_cbranch_scc1", l)
        n0 = len(st.ops)
        st.cmp("s_cmp_lg_u32", sWave, 0); st.branch("s_cbranch_scc1", l)
        self.flag_add_body(st, rDBG, 0)
        for o in st.ops[n0:]: o.skip = True
        st.label(l)

    def flag_add_body(self, st, srd, soff):
        st.raw("s_mov_b64 exec, 1", "salu", ["exec"], [])
        st.v("v_mov_b32", V(8), 0); st.v("v_mov_b32", V(9), 1)
        st.add(Op(f"buffer_atomic_add v9, v8, {srd}, {fmt(soff)} offen sc1", "vst", [], ["v8", "v9"] + srd.regs() + regs_of(soff), cond=True))
        st.raw("s_mov_b64 exec, -1", "salu", ["exec"], [])

    def flag_add(self, st, soff):
        l = self.newlabel("noflag")
        st.cmp("s_cmp_lg_u32", sWave, 0); st.branch("s_cbranch_scc1", l)
        n0 = len(st.ops)
        self.flag_add_body(st, rWS, soff)
        for o in st.ops[n0:]: o.skip = True
        st.label(l)

    def gate_check(self, st, vt):
        a = Stream(); a.bload("buffer_load_dword", vt, self.vZero, rDBG, 0, flags="sc1")
        b = Stream()
        l = self.newlabel("gateok")
        b.readfirstlane(sT3, vt); b.cmp("s_cmp_ge_u32", sT3, 16); b.branch("s_cbranch_scc1", l)
        n0 = len(b.ops)
        self.poll(b, 0, 16, self.vZero, vt, srd=rDBG, wave0=False)
        for o in b.ops[n0:]: o.skip = True
        b.label(l)
        return a.ops, b.ops

    def gu_epilogue(self, st, acc, nch, T):
        for c in range(nch):
            a = acc[16 * c:16 * c + 16]
            t = T[4 * (c & 1):4 * (c & 1) + 4]
            for r in range(8): st.v("v_max_f32", a[r], 0, a[r])
            for r in range(8): st.v("v_mul_f32", a[r], a[r], a[8 + r])
            for q in range(4): st.v("v_cvt_pk_bf16_f32", t[q], a[2 * q], a[2 * q + 1])
            if c == 4: st.s("s_add_u32", sHb, sHb, 4096)
            if c == 6:
                l = self.newlabel("nost")
                st.cmp("s_cmp_ge_u32", sJ, 6); st.branch("s_cbranch_scc1", l)
                o = st.bstore("buffer_store_dwordx4", t, self.vL16, rWS, sHb, off=(c & 3) * 1024, flags="sc1", tag="h", cond=True)
                o.skip = True
                st.label(l)
            else:
                st.bstore("buffer_store_dwordx4", t, self.vL16, rWS, sHb, off=(c & 3) * 1024, flags="sc1", tag="h")

    def publish_h(self, st):
        st.waitvm_all()
        st.barrier()
        st.s("s_lshl_b32", sT2, sRB, 7); st.s("s_add_u32", sT2, sT2, WS_FL + FL_H)
        self.flag_add(st, sT2)

    def q_path(self):
        st = self.st
        st.label("L_qpath")
        accQ = V(32, 32); accG = V(64, 112)
        T8, m6, tmp8 = V(176, 8), V(184, 6), V(190, 8)
        vA = [{0: V(200), 2: V(201)}, {0: V(202), 2: V(203)}]
        vGU = [[V(204 + 3 * c + w) for w in range(3)] for c in range(7)]
        vDG = [[V(225 + 4 * iu + ii) for ii in range(4)] for iu in range(2)]
        vL = V(1)
        st.s("s_mul_i32", sT1, sJ, 7); st.s("s_add_u32", sT1, sT1, 32)
        st.cmp("s_cmp_eq_u32", sJ, 7); st.s("s_cselect_b32", sT1, 80, sT1)
        st.s("s_lshl_b32", sColG, sT1, 5)
        st.s("s_lshl_b32", sT2, sRB, 2); st.s("s_add_u32", sT2, sT2, sWave); st.s("s_mul_i32", sT2, sT2, 86)
        st.s("s_add_u32", sT2, sT2, sT1); st.s("s_lshl_b32", sHb, sT2, 10)
        lr, pos, a, b = V(8), V(9), V(10), V(11)
        st.v("v_lshrrev_b32", lr, 4, vL); st.v("v_and_b32", pos, 15, vL)
        st.v("v_lshlrev_b32", a, 1, lr); st.v("v_xor_b32", pos, pos, a)
        st.s("s_lshl_b32", sT1, sWave, 2); st.v("v_add_u32", b, sT1, lr)
        st.s("s_mov_b32", sT2, 2752); st.v("v_mul_lo_u32", b, b, sT2)
        for iu in range(2):
            st.v("v_xor_b32", a, 8 * iu, pos); st.v("v_min_u32", a, 13, a); st.v("v_lshlrev_b32", a, 4, a)
            st.v("v_add_u32", vDG[iu][0], a, b)
            for ii in range(1, 4): st.v("v_add_u32", vDG[iu][ii], ii * 16 * 2752, vDG[iu][0])
        def gstage(s, lds):
            x = Stream()
            x.s("s_add_u32", sSo, sColG, s * 64 * 2752)
            for ii in range(4):
                for iu in range(2):
                    x.s("s_add_u32", M0, sWl, lds + iu * 16384 + ii * 4096)
                    x.dma(vDG[iu][ii], rU if iu else rG, sSo, tag=f"G{s}")
            return Stage(f"G{s}", x.ops, f"G{s}")
        qlds = [R[4], R[4] + 8192, R[4] + 16384, R[0], R[0] + 8192, R[0] + 16384, R[0] + 24576, R[4] + 24576]
        glds = [R[1], R[2], R[3], R[0], R[4], R[1], R[2], R[3]]
        Q = [self.stage128(f"Q{s}", rQKV, sCol1, s * 64 * 3072, qlds[s]) for s in range(8)]
        for s in range(3): Q[s].tag = ("p1", s)
        G = [gstage(s, glds[s]) for s in range(8)]
        for s in range(3, 7): self.issue(st, Q[s])
        for s in range(3): self.issue(st, G[s])
        self.gate_add(st)
        self.lane_bits(st)
        self.addr128(st, vA, [0, 2], 8)
        a, t = V(12), V(13)
        self.cc_part(st, a, t)
        st.v("v_lshlrev_b32", t, 3, self.b_hf); st.v("v_add_u32", t, t, self.b_r); st.v("v_lshlrev_b32", t, 8, t); st.v("v_add_u32", a, a, t)
        st.v("v_lshlrev_b32", t, 14, self.b_g); st.v("v_add_u32", a, a, t)
        st.v("v_lshlrev_b32", V(14), 2, self.b_g)
        for c in range(7):
            st.v("v_xor_b32", t, c, self.b_r); st.v("v_xor_b32", t, t, V(14)); st.v("v_lshlrev_b32", t, 5, t)
            st.v("v_add_u32", vGU[c][0], a, t)
            st.v("v_add_u32", vGU[c][1], 65536, vGU[c][0]); st.v("v_add_u32", vGU[c][2], 131072, vGU[c][0])
        self.p2_setup(st)
        self.phi_frags(st)
        self.stats_final(st)
        self.centering(st)
        st.waitlds()
        items = []
        for s in range(8):
            for ks in range(4):
                for c in range(2):
                    ad = qlds[s] + ks * 16 * 128
                    rd = [(vA[c][(ad + q * 512) >> 16], (ad + q * 512) & 0xffff) for q in range(2)]
                    k = 4 * s + ks
                    items.append(Item(accQ[16 * c:16 * c + 16], aX[4 * k:4 * k + 4], Q[s], rd, k == 0))
        nq = len(items)
        for s in range(8):
            for ks in range(4):
                for c in range(7):
                    ad = glds[s] + ks * 16 * 256
                    rd = [(vGU[c][(ad + q * 1024) >> 16], (ad + q * 1024) & 0xffff) for q in range(2)]
                    k = 4 * s + ks
                    items.append(Item(accG[16 * c:16 * c + 16], aX[4 * k:4 * k + 4], G[s], rd, k == 0))
        P = {i: self.p2_stage(i) for i in range(15)}
        pend = [(Q[7], "Q0"), (G[3], "G0"), (G[4], "G1"), (G[5], "G2"), (G[6], "G3"), (G[7], "G4"),
                (P[0], "G5"), (P[1], "G5"), (P[8], "G6"), (P[2], "G7"), (P[3], "G7")]
        pro, gaps, bar = build_gaps(items, pend)
        f = Stream()
        gi, gc = self.gate_check(f, V(198))
        for c in range(2): self.phi_logits(f, accQ[16 * c:16 * c + 16], tmp8, c)
        for hd in range(4): self.softmax(f, accQ[8 * hd:8 * hd + 8], T8, m6)
        for o in f.ops: o.after = nq
        gaps[nq + 8].extend(gi)
        st.extend(pro)
        out, left = interleave2(gaps, [f.ops], 5, {})
        st.extend(out); st.extend(left[0])
        st.extend(gc)
        st.barrier()
        for i in range(4, 8): self.issue(st, P[i])
        self.gu_epilogue(st, accG, 7, T8)
        if self.debug == "p1":
            self.dump_regs(st, accQ, 0); return
        self.publish_h(st)
        self.ostep(st, accQ)

    def ostep(self, st, phiq):
        D = V(64, 16); Af = V(80, 8); Ds = [V(96, 16), V(112, 16)]; T = V(128, 8)
        st.s("s_lshl_b32", sT2, sJ, 7); st.s("s_add_u32", sT2, sT2, WS_FL + FL_KV)
        self.poll(st, sT2, 16, self.vZero, V(198))
        st.barrier()
        st.s("s_lshl_b32", sT1, sJ, 2); st.s("s_add_u32", sT1, sT1, sWave); st.s("s_lshl_b32", sT1, sT1, 12); st.s("s_add_u32", sT1, sT1, WS_KV)
        st.v("v_lshlrev_b32", V(8), 2, V(1))
        for r in range(16): st.bload("buffer_load_dword", D[r], V(8), rWS, sT1, off=r * 256, flags="sc1")
        for q in range(8): st.v("v_cvt_pk_bf16_f32", Af[q], D[2 * q], D[2 * q + 1])
        st.s("s_lshl_b32", sT2, sWave, 11)
        st.v("v_add_u32", V(9), sT2, self.vL16); st.v("v_add_u32", V(9), MISC + 1024, V(9))
        st.dsw("ds_write_b128", V(9), Af[0:4]); st.dsw("ds_write_b128", V(9), Af[4:8], off=1024)
        st.waitlds(); st.barrier()
        st.v("v_add_u32", V(10), MISC + 1024, self.vL16)
        fr = A(176, 32)
        for hd in range(4):
            for pn in range(2): st.dsr("ds_read_b128", fr[8 * hd + 4 * pn:8 * hd + 4 * pn + 4], V(10), off=hd * 2048 + pn * 1024)
        st.s("s_lshl_b32", sT1, sRB, 2); st.s("s_add_u32", sT1, sT1, sWave); st.s("s_lshl_b32", sT1, sT1, 5)
        st.s("s_lshl_b32", sT2, sJ, 2); st.s("s_add_u32", sT1, sT1, sT2); st.s("s_lshl_b32", sOb, sT1, 10); st.s("s_add_u32", sOb, sOb, WS_O)
        def mm(hd):
            d = Ds[hd & 1]; p = phiq[8 * hd:8 * hd + 8]
            st.mfma(d, fr[8 * hd:8 * hd + 4], p[4:8], 0)
            st.mfma(d, fr[8 * hd + 4:8 * hd + 8], p[0:4], d)
        mm(0); mm(1)
        for hd in range(4):
            d = Ds[hd & 1]; t = T[4 * (hd & 1):4 * (hd & 1) + 4]
            st.v("v_add_f32", d[8], 1e-6, d[8]); st.v("v_rcp_f32", d[8], d[8])
            for r in range(8): st.v("v_mul_f32", d[r], d[r], d[8])
            for q in range(4): st.v("v_cvt_pk_bf16_f32", t[q], d[2 * q], d[2 * q + 1])
            if hd + 2 < 4: mm(hd + 2)
            st.bstore("buffer_store_dwordx4", t, self.vL16, rWS, sOb, off=hd * 1024, flags="sc1", tag="o")
        st.waitvm("o"); st.barrier()
        st.s("s_lshl_b32", sT2, sRB, 7); st.s("s_add_u32", sT2, sT2, WS_FL + FL_O)
        self.flag_add(st, sT2)

    def kv_path(self):
        st = self.st
        st.label("L_kvpath")
        accK = V(32, 32); accV = V(64, 32); accG = V(96, 64); kvD = V(160, 16)
        T8, m6, tmp8 = V(176, 8), V(184, 6), V(190, 8)
        vA = [{0: V(200), 1: V(201), 2: V(202)}, {0: V(203), 1: V(204), 2: V(205)}]
        vGU = [[V(206 + 2 * c + w) for w in range(2)] for c in range(4)]
        vDG = [[V(214 + 2 * iu + ii) for ii in range(2)] for iu in range(2)]
        vKw, vVw, vOw = V(218), V(219), V(220)
        vKr, vVr = [V(221), V(222)], [V(223), V(224)]
        vL = V(1)
        PHI, VB = R[4], R[1]
        st.s("s_lshl_b32", sColG, sJ, 7)
        st.s("s_lshl_b32", sT2, sRB, 2); st.s("s_add_u32", sT2, sT2, sWave); st.s("s_mul_i32", sT2, sT2, 86)
        st.s("s_lshl_b32", sT1, sJ, 2); st.s("s_add_u32", sT2, sT2, sT1); st.s("s_lshl_b32", sHb, sT2, 10)
        r8, ps, a, b = V(8), V(9), V(10), V(11)
        st.v("v_lshrrev_b32", r8, 3, vL); st.v("v_and_b32", ps, 7, vL)
        st.v("v_bfe_u32", a, r8, 1, 1); st.v("v_lshlrev_b32", a, 1, a); st.v("v_xor_b32", ps, ps, a)
        st.s("s_lshl_b32", sT1, sWave, 3); st.v("v_add_u32", b, sT1, r8)
        st.s("s_mov_b32", sT2, 2752); st.v("v_mul_lo_u32", b, b, sT2)
        for iu in range(2):
            st.v("v_xor_b32", a, 4 * iu, ps); st.v("v_lshlrev_b32", a, 4, a)
            st.v("v_add_u32", vDG[iu][0], a, b); st.v("v_add_u32", vDG[iu][1], 32 * 2752, vDG[iu][0])
        def gstage(s, lds):
            x = Stream()
            x.s("s_add_u32", sSo, sColG, s * 64 * 2752)
            for ii in range(2):
                for iu in range(2):
                    x.s("s_add_u32", M0, sWl, lds + iu * 8192 + ii * 4096)
                    x.dma(vDG[iu][ii], rU if iu else rG, sSo, tag=f"G{s}")
            return Stage(f"G{s}", x.ops, f"G{s}")
        klds = [R[4], R[4] + 8192, R[4] + 16384, R[0], R[0] + 8192, R[0] + 16384, R[0] + 24576, R[4] + 24576]
        vlds = [R[1] + 8192 * s for s in range(8)]
        glds = [R[3], R[3] + 16384, R[0], R[0] + 16384, R[2], R[2] + 16384, R[3], R[3] + 16384]
        K = [self.stage128(f"K{s}", rQKV, sCol1, s * 64 * 3072, klds[s]) for s in range(8)]
        for s in range(3): K[s].tag = ("p1", s)
        Vs = [self.stage128(f"V{s}", rQKV, sColV, s * 64 * 3072, vlds[s]) for s in range(8)]
        G = [gstage(s, glds[s]) for s in range(8)]
        for s in range(3, 7): self.issue(st, K[s])
        for s in range(8): self.issue(st, Vs[s])
        for s in range(2): self.issue(st, G[s])
        self.gate_add(st)
        self.lane_bits(st)
        self.addr128(st, vA, [0, 1, 2], 8)
        a, t = V(12), V(13)
        self.cc_part(st, a, t)
        st.v("v_lshlrev_b32", t, 3, self.b_hf); st.v("v_add_u32", t, t, self.b_r); st.v("v_lshlrev_b32", t, 7, t); st.v("v_add_u32", a, a, t)
        st.v("v_lshlrev_b32", t, 13, self.b_g); st.v("v_add_u32", a, a, t)
        st.v("v_bfe_u32", V(14), self.b_r, 1, 1); st.v("v_lshlrev_b32", t, 1, self.b_g); st.v("v_xor_b32", V(14), V(14), t)
        for c in range(4):
            st.v("v_xor_b32", t, c, V(14)); st.v("v_lshlrev_b32", t, 5, t)
            st.v("v_add_u32", vGU[c][0], a, t); st.v("v_add_u32", vGU[c][1], 65536, vGU[c][0])
        hi, lo = V(12), V(13)
        st.v("v_and_b32", lo, 1, self.b_cc); st.v("v_lshlrev_b32", lo, 3, lo)
        st.v("v_lshrrev_b32", V(15), 1, self.b_r)
        st.v("v_lshrrev_b32", V(16), 1, self.b_cc)
        st.s("s_lshl_b32", sT1, sWave, 13)
        st.s("s_lshr_b32", sT2, sWave, 1); st.s("s_mul_i32", sT2, sT2, 8704); st.s("s_add_u32", sT2, sT2, VB)
        st.s("s_and_b32", sT3, sWave, 1); st.s("s_lshl_b32", sT3, sT3, 1)
        for q in range(2):
            st.v("v_lshlrev_b32", hi, 3, self.b_hf); st.v("v_add_u32", hi, hi, self.b_r); st.v("v_add_u32", hi, 4 * q, hi)
            st.v("v_lshlrev_b32", hi, 6, hi); st.v("v_add_u32", hi, hi, lo)
            st.v("v_add_u32", V(17), 2 * q, V(15))
            st.v("v_lshlrev_b32", V(18), 1, self.b_g); st.v("v_add_u32", V(18), V(18), V(16)); st.v("v_xor_b32", V(18), V(18), V(17))
            st.v("v_lshlrev_b32", V(18), 4, V(18)); st.v("v_add_u32", V(18), V(18), hi)
            st.v("v_add_u32", V(18), sT1, V(18)); st.v("v_add_u32", vKr[q], PHI, V(18))
            st.v("v_add_u32", V(18), sT3, V(16)); st.v("v_xor_b32", V(18), V(18), V(17))
            st.v("v_lshlrev_b32", V(18), 4, V(18)); st.v("v_add_u32", V(18), V(18), hi)
            st.v("v_lshlrev_b32", V(19), 3, self.b_cc); st.v("v_add_u32", V(19), 1024, V(19))
            st.v("v_cmp_eq_u32", VCC, 0, self.b_g)
            st.v("v_cndmask_b32", V(18), V(19), V(18))
            st.v("v_add_u32", vVr[q], sT2, V(18))
        tk, sw = V(12), V(13)
        st.v("v_and_b32", tk, 31, vL); st.v("v_bfe_u32", sw, tk, 1, 2)
        st.v("v_lshlrev_b32", sw, 4, sw); st.v("v_lshlrev_b32", V(14), 3, self.b_hf)
        st.s("s_lshl_b32", sT1, sWave, 11)
        st.v("v_lshlrev_b32", V(15), 6, tk); st.v("v_add_u32", V(15), sT1, V(15)); st.v("v_add_u32", V(15), V(15), V(14))
        self.vKw = [V(225 + i) for i in range(4)]; self.vVw = [V(229 + i) for i in range(4)]
        st.v("v_lshrrev_b32", V(16), 4, tk); st.s("s_lshl_b32", sT2, sWave, 1); st.v("v_add_u32", V(16), sT2, V(16))
        st.s("s_mov_b32", sT3, 1088); st.v("v_mul_lo_u32", V(16), V(16), sT3)
        st.v("v_and_b32", V(17), 15, tk); st.v("v_lshlrev_b32", V(17), 6, V(17)); st.v("v_add_u32", V(16), V(16), V(17)); st.v("v_add_u32", V(16), V(16), V(14))
        for pc in range(4):
            st.v("v_xor_b32", V(17), pc << 4, sw)
            st.v("v_add_u32", V(18), V(15), V(17)); st.v("v_add_u32", self.vKw[pc], PHI, V(18))
            st.v("v_add_u32", V(18), V(16), V(17)); st.v("v_add_u32", self.vVw[pc], VB, V(18))
        st.v("v_lshrrev_b32", V(15), 5, vL); st.s("s_mov_b32", sT3, 8704); st.v("v_mul_lo_u32", V(15), V(15), sT3)
        st.v("v_bfe_u32", V(16), vL, 4, 1); st.v("v_add_u32", V(16), sT2, V(16)); st.s("s_mov_b32", sT3, 1088); st.v("v_mul_lo_u32", V(16), V(16), sT3)
        st.v("v_and_b32", V(17), 15, vL); st.v("v_lshlrev_b32", V(17), 2, V(17))
        st.v("v_add_u32", V(15), V(15), V(16)); st.v("v_add_u32", V(15), V(15), V(17)); st.v("v_add_u32", vOw, VB + 1024, V(15))
        self.p2_setup(st)
        self.phi_frags(st)
        self.stats_final(st)
        self.centering(st)
        st.waitlds()
        items = []
        def pass128(stages, lds, acc):
            for s in range(8):
                for ks in range(4):
                    for c in range(2):
                        ad = lds[s] + ks * 16 * 128
                        rd = [(vA[c][(ad + q * 512) >> 16], (ad + q * 512) & 0xffff) for q in range(2)]
                        k = 4 * s + ks
                        items.append(Item(acc[16 * c:16 * c + 16], aX[4 * k:4 * k + 4], stages[s], rd, k == 0))
        pass128(K, klds, accK); nk = len(items)
        pass128(Vs, vlds, accV); nv = len(items)
        for s in range(8):
            for ks in range(4):
                for c in range(4):
                    ad = glds[s] + ks * 16 * 128
                    rd = [(vGU[c][(ad + q * 512) >> 16], (ad + q * 512) & 0xffff) for q in range(2)]
                    k = 4 * s + ks
                    items.append(Item(accG[16 * c:16 * c + 16], aX[4 * k:4 * k + 4], G[s], rd, k == 0))
        P = {i: self.p2_stage(i) for i in range(15)}
        pend = [(K[7], "K0"), (G[2], "V0"), (G[3], "V0"), (G[4], "G1"), (G[5], "G1"), (G[6], "G2"), (G[7], "G3"),
                (P[0], "G5"), (P[1], "G5"), (P[4], "G7"), (P[5], "G7")]
        pro, gaps, bar = build_gaps(items, pend)
        f = Stream()
        gi, gc = self.gate_check(f, V(198))
        for c in range(2): self.phi_logits(f, accK[16 * c:16 * c + 16], tmp8, c)
        def kwrite(hd):
            p = accK[8 * hd:8 * hd + 8]
            n0 = len(f.ops)
            f.dsw("ds_write_b64", self.vKw[0], p[4:6], off=hd * 8192); f.dsw("ds_write_b64", self.vKw[1], p[6:8], off=hd * 8192)
            f.dsw("ds_write_b64", self.vKw[2], p[0:2], off=hd * 8192); f.dsw("ds_write_b64", self.vKw[3], p[2:4], off=hd * 8192)
            return f.ops[n0:]
        for hd in range(2): self.softmax(f, accK[8 * hd:8 * hd + 8], T8, m6)
        for o in f.ops: o.after = nk
        n0 = len(f.ops)
        kwrite(0); kwrite(1)
        for hd in range(2, 4):
            self.softmax(f, accK[8 * hd:8 * hd + 8], T8, m6); kwrite(hd)
        for o in f.ops[n0:]: o.after = bar["V1"] + 1
        n0 = len(f.ops)
        f.v("v_mov_b32", tmp8[0], 0x3f803f80); f.dsw("ds_write_b32", vOw, tmp8[0])
        for c in range(2):
            a = accV[16 * c:16 * c + 16]
            for r in range(16): f.v("v_mul_f32", a[r], a[r], self.vRstd)
            for q in range(8): f.v("v_cvt_pk_bf16_f32", tmp8[q], a[2 * q], a[2 * q + 1])
            for pc in range(4): f.dsw("ds_write_b64", self.vVw[pc], tmp8[2 * pc:2 * pc + 2], off=c * 8704)
        f.waitlds(); f.barrier()
        fr = A(176, 32)
        def kvreads(ks):
            b = fr[8 * (ks & 3):8 * (ks & 3) + 8]
            for q in range(2): f.dsr("ds_read_b64_tr_b16", b[2 * q:2 * q + 2], vKr[q], off=ks * 1024)
            for q in range(2): f.dsr("ds_read_b64_tr_b16", b[4 + 2 * q:4 + 2 * q + 2], vVr[q], off=ks * 1088)
        for ks in range(3): kvreads(ks)
        for ks in range(8):
            if ks + 3 < 8: kvreads(ks + 3)
            b = fr[8 * (ks & 3):8 * (ks & 3) + 8]
            f.mfma(kvD, b[0:4], b[4:8], kvD if ks else 0)
        f.add(Block(gc, 4))
        f.s("s_lshl_b32", sT1, sJ, 2); f.s("s_add_u32", sT1, sT1, sWave); f.s("s_lshl_b32", sT1, sT1, 12); f.s("s_add_u32", sKVb, sT1, WS_KV)
        f.v("v_lshlrev_b32", tmp8[0], 2, V(1))
        for r in range(16):
            f.add(Op(f"buffer_atomic_add_f32 {kvD[r]}, {tmp8[0]}, {rWS}, {sKVb} offen offset:{r * 256}", "vst", [],
                     kvD[r].regs() + tmp8[0].regs() + rWS.regs() + sKVb.regs(), tag="kva"))
        f.waitlds(); f.barrier()
        for i in (8, 2, 3):
            for grp in split_dma(self.p2_stage(i, sSo3).dma_ops): f.add(Block(grp, len(grp)))
        f.add(Delay(48))
        x = Stream()
        x.waitvm("kva"); x.barrier()
        x.s("s_lshl_b32", sT2, sJ, 7); x.s("s_add_u32", sT2, sT2, WS_FL + FL_KV)
        self.flag_add(x, sT2)
        f.add(Block(x.ops, 5))
        for o in f.ops[n0:]: o.after = max(o.after, nv)
        gaps[nk + 8].extend(gi)
        st.extend(pro)
        budgets = {nk - 1: 260}
        out, left = interleave2(gaps, [f.ops], 5, budgets)
        st.extend(out); st.extend(left[0])
        st.barrier()
        for i in (6, 7): self.issue(st, P[i])
        self.gu_epilogue(st, accG, 4, T8)
        if self.debug == "p1":
            self.dump_regs(st, accK, 0); return
        self.publish_h(st)

    def p2(self):
        st = self.st
        st.label("L_p2")
        accB = V(32, 32); accS = V(64, 32); X = V(96, 32); xr = V(128, 8); vR2t = V(136)
        vL = V(1)
        st.waitvm_all()
        st.s("s_lshl_b32", sT1, sWave, 8)
        st.v("v_lshlrev_b32", V(8), 2, vL); st.v("v_add_u32", V(9), sT1, V(8)); st.v("v_add_u32", V(9), MISC, V(9))
        st.dsw("ds_write_b32", V(9), self.vR2)
        st.s("s_lshl_b32", sT1, sRB, 7); st.s("s_lshl_b32", sT2, sHalf, 6); st.s("s_add_u32", sT1, sT1, sT2)
        st.s("s_lshl_b32", sT2, sI, 5); st.s("s_add_u32", sT1, sT1, sT2); st.s("s_lshl_b32", sT1, sT1, 10)
        st.s("s_lshl_b32", sT2, sC64, 7); st.s("s_add_u32", sT1, sT1, sT2); st.s("s_lshl_b32", sT2, sKh, 6); st.s("s_add_u32", sOutb, sT1, sT2)
        vXo = V(137); vOo = V(138)
        st.v("v_and_b32", V(10), 31, vL); st.v("v_lshlrev_b32", V(10), 10, V(10)); st.v("v_lshrrev_b32", V(11), 5, vL)
        st.v("v_lshlrev_b32", V(12), 3, V(11)); st.v("v_add_u32", vXo, V(10), V(12))
        st.v("v_lshlrev_b32", V(12), 4, V(11)); st.v("v_add_u32", vOo, V(10), V(12))
        for i in range(4): st.bload("buffer_load_dwordx2", xr[2 * i:2 * i + 2], vXo, rX, sOutb, off=16 * i)
        st.waitlds()
        st.s("s_lshl_b32", sT2, sRB, 7); st.s("s_add_u32", sT2, sT2, WS_FL + FL_H)
        self.poll(st, sT2, 16, self.vZero, V(198))
        st.barrier()
        st.s("s_lshl_b32", sT1, sHalf, 1); st.s("s_add_u32", sT1, sT1, sI); st.s("s_lshl_b32", sT1, sT1, 8)
        st.v("v_add_u32", V(9), sT1, V(8)); st.v("v_add_u32", V(9), MISC, V(9))
        st.dsr("ds_read_b32", vR2t, V(9))
        def bfrag(s): return aX[4 * (s % 32):4 * (s % 32) + 4]
        def bload(x, s):
            if s < 43:
                if s % 4 == 0: x.s("s_add_u32", sHb, sHl, s * 1024)
                x.bload("buffer_load_dwordx4", bfrag(s), self.vL16, rWS, sHb, off=(s % 4) * 1024, flags="sc1")
            else:
                sp = s - 43
                if sp % 4 == 0: x.s("s_add_u32", sOb, sOl, sp * 1024)
                x.bload("buffer_load_dwordx4", bfrag(s), self.vL16, rWS, sOb, off=(sp % 4) * 1024, flags="sc1")
        for s in range(32): bload(st, s)
        P = {i: self.p2_stage(i) for i in range(15)}
        for i in range(9): P[i].tag = "none"
        items = []
        for s in range(59):
            stn = s // 4 if s < 43 else 11 + (s - 43) // 4
            q4 = s % 4 if s < 43 else (s - 43) % 4
            for a in range(2):
                ad = (stn % 9) * 16384 + q4 * 2048
                rd = [(self.vP[a][(ad + q * 1024) >> 16], (ad + q * 1024) & 0xffff) for q in range(2)]
                acc = (accB if s < 43 else accS)[16 * a:16 * a + 16]
                items.append(Item(acc, bfrag(s), P[stn], rd, s == 0 or s == 43))
        x = Stream()
        x.s("s_lshl_b32", sT2, sRB, 7); x.s("s_add_u32", sT2, sT2, WS_FL + FL_O)
        self.poll(x, sT2, 8, self.vZero, V(198))
        pend = [(P[9 + i], f"P{i + 2}") for i in range(6)]
        pro, gaps, bar = build_gaps(items, pend, pre_barrier={"P9": x.ops})
        for s in range(32, 43):
            y = Stream(); bload(y, s); gaps[2 * (s - 32) + 2].extend(y.ops)
        g0 = bar["P9"] + 1
        for k, s in enumerate(range(43, 59)):
            y = Stream(); bload(y, s)
            g = max(g0 + k // 2, 2 * (s - 32) + 2)
            gaps[g].extend(y.ops)
        st.extend(pro)
        for g in gaps: st.extend(g)
        st.s("s_lshl_b32", sT1, sWave, 13)
        st.v("v_add_u32", V(8), sT1, self.vL16)
        for q in range(4): st.dsw("ds_write_b128", V(8), accB[16 + 4 * q:16 + 4 * q + 4], off=q * 1024)
        for q in range(4): st.dsw("ds_write_b128", V(8), accS[16 + 4 * q:16 + 4 * q + 4], off=4096 + q * 1024)
        st.waitlds(); st.barrier()
        st.s("s_xor_b32", sT1, sWave, 2); st.s("s_lshl_b32", sT1, sT1, 13)
        st.v("v_add_u32", V(8), sT1, self.vL16)
        for q in range(8): st.dsr("ds_read_b128", X[4 * q:4 * q + 4], V(8), off=q * 1024)
        T = V(140, 16); U = V(156, 16); Y = V(172, 8)
        B = accB[0:16]; Sx = accS[0:16]
        st.v("v_mul_f32", V(139), -LOG2E, vR2t)
        for r in range(16): st.v("v_add_f32", B[r], B[r], X[r])
        for r in range(16): st.v("v_mul_f32", T[r], B[r], V(139))
        for r in range(16): st.v("v_exp_f32", T[r], T[r])
        for r in range(16): st.v("v_add_f32", Sx[r], Sx[r], X[16 + r])
        for r in range(16): st.v("v_add_f32", T[r], 1.0, T[r])
        for r in range(16): st.v("v_rcp_f32", T[r], T[r])
        for r in range(16): st.v("v_mul_f32", Sx[r], Sx[r], B[r])
        for r in range(16):
            i, j = r >> 2, r & 3
            src = xr[2 * i + (j >> 1)]
            if j & 1: st.v("v_and_b32", U[r], 0xffff0000, src)
            else: st.v("v_lshlrev_b32", U[r], 16, src)
        for r in range(16): st.v("v_mul_f32", Sx[r], Sx[r], T[r])
        for r in range(16): st.v("v_fma_f32", U[r], Sx[r], vR2t, U[r])
        for q in range(8): st.v("v_cvt_pk_bf16_f32", Y[q], U[2 * q], U[2 * q + 1])
        for p in range(2):
            st.swap32(Y[4 * p], Y[4 * p + 2]); st.swap32(Y[4 * p + 1], Y[4 * p + 3])
            st.bstore("buffer_store_dwordx4", Y[4 * p:4 * p + 4], vOo, rOUT, sOutb, off=32 * p)
        st.waitvm_all()

    def build(self):
        st = self.st
        self.prologue()
        self.xstats()
        st.cmp("s_cmp_eq_u32", sType, 0); st.branch("s_cbranch_scc1", "L_kvpath")
        self.q_path()
        qend = len(st.ops)
        st.branch("s_branch", "L_p2")
        head = Stream(); head.ops = st.ops
        self.st = st = Stream()
        self.kv_path()
        kv = st
        self.st = st = Stream()
        self.p2()
        p2 = st
        pre_n = None
        ops_q = finalize(head)
        ops_kv = finalize(kv)
        ops_p2 = finalize(p2)
        return ops_q, ops_kv, ops_p2

    def text(self):
        q, kv, p2 = self.build()
        hdr = [
            "; Fused Hedgehog linear attention + ReGLU kernel (generated by my own generator script)",
            "; @launch grid=(256,1,1) block=(256,1,1) lds=163840",
            '.amdgcn_target "amdgcn-amd-amdhsa--gfx950"', ".text", f".globl {KNAME}", ".p2align 8",
            f".type {KNAME},@function", f"{KNAME}:"]
        tail = ["L_end:", "s_endpgm", "L_codeend:", '.section .rodata,"a"', ".p2align 6", f".amdhsa_kernel {KNAME}",
                "  .amdhsa_next_free_vgpr 512", "  .amdhsa_next_free_sgpr 102", "  .amdhsa_accum_offset 256",
                "  .amdhsa_group_segment_fixed_size 0", "  .amdhsa_kernarg_size 88", "  .amdhsa_user_sgpr_count 2",
                "  .amdhsa_user_sgpr_kernarg_segment_ptr 1", "  .amdhsa_system_sgpr_workgroup_id_x 1", ".end_amdhsa_kernel"]
        return "\n".join(hdr) + "\n" + to_text(q) + to_text(kv) + to_text(p2) + "\n".join(tail) + "\n"

if __name__ == "__main__":
    out = sys.argv[1] if len(sys.argv) > 1 else "main.s"
    g = Main()
    t = g.text()
    open(out, "w").write(t)
    print("wrote", out, len(t), "bytes,", t.count("\n"), "lines")
```

```python
import re

class Reg:
    __slots__ = ("k", "n", "c")
    def __init__(self, k, n, c=1):
        self.k, self.n, self.c = k, n, c
    def __getitem__(self, i):
        if isinstance(i, slice):
            a = i.start or 0
            b = self.c if i.stop is None else i.stop
            assert 0 <= a < b <= self.c, (self, i)
            return Reg(self.k, self.n + a, b - a)
        assert 0 <= i < self.c, (self, i)
        return Reg(self.k, self.n + i, 1)
    def regs(self):
        return [f"{self.k}{self.n + i}" for i in range(self.c)]
    def __str__(self):
        if self.c == 1:
            return f"{self.k}{self.n}"
        return f"{self.k}[{self.n}:{self.n + self.c - 1}]"
    __repr__ = __str__

def V(n, c=1): return Reg("v", n, c)
def A(n, c=1): return Reg("a", n, c)
def S(n, c=1): return Reg("s", n, c)

class Special:
    def __init__(self, name, regs): self.name, self._r = name, regs
    def regs(self): return self._r
    def __str__(self): return self.name
VCC = Special("vcc", ["vcc"])
M0 = Special("m0", ["m0"])
EXEC = Special("exec", ["exec"])

def fmt(x):
    if isinstance(x, (Reg, Special)): return str(x)
    if isinstance(x, float):
        import struct
        if x in (0.0, 0.5, 1.0, 2.0, 4.0, -0.5, -1.0, -2.0, -4.0): return repr(x)
        return "0x%08x" % struct.unpack("<I", struct.pack("<f", x))[0]
    if isinstance(x, int):
        if -16 <= x <= 64: return str(x)
        return "0x%x" % (x & 0xffffffff)
    return str(x)

def regs_of(x):
    if isinstance(x, (Reg, Special)): return x.regs()
    if isinstance(x, Neg): return regs_of(x.x)
    return []

class Neg:
    def __init__(self, x): self.x = x
    def __str__(self): return "-" + fmt(self.x)

VMCOST = 5
TRANS = ("v_exp_f32", "v_log_f32", "v_rcp_f32", "v_rsq_f32", "v_sqrt_f32")

class Op:
    __slots__ = ("text", "kind", "defs", "uses", "tag", "cond", "srcc", "srcab", "after", "cost", "n", "skip")
    def __init__(self, text, kind, defs=(), uses=(), tag=None, cond=False, srcc=(), srcab=(), cost=1):
        self.text, self.kind = text, kind
        self.defs, self.uses = set(defs), set(uses)
        self.tag, self.cond = tag, cond
        self.srcc, self.srcab = set(srcc), set(srcab)
        self.after = 0
        self.cost = cost
        self.n = None
        self.skip = False
    def __repr__(self): return self.text

class Stream:
    def __init__(self):
        self.ops = []
    def add(self, op):
        self.ops.append(op); return op
    def extend(self, other):
        self.ops.extend(other.ops if isinstance(other, Stream) else other)
    def v(self, name, dst, *srcs, mods="", rmw=False):
        kind = "trans" if name in TRANS else "valu"
        defs = regs_of(dst)
        uses = [r for s in srcs for r in regs_of(s)]
        if rmw or name.startswith("v_fmac") or name.startswith("v_dot2c"): uses += defs
        if name.startswith("v_cndmask") and len(srcs) == 2:
            uses.append("vcc"); txt = f"{name} {fmt(dst)}, " + ", ".join(fmt(s) for s in srcs) + ", vcc"
        else:
            txt = f"{name} {fmt(dst)}, " + ", ".join(fmt(s) for s in srcs)
        if mods: txt += " " + mods
        return self.add(Op(txt, kind, defs, uses, cost=2 if kind == "trans" else 1))
    def swap32(self, a, b):
        r = regs_of(a) + regs_of(b)
        return self.add(Op(f"v_permlane32_swap_b32 {a}, {b}", "perm", r, r))
    def readfirstlane(self, sd, vs):
        return self.add(Op(f"v_readfirstlane_b32 {sd}, {vs}", "rfl", regs_of(sd), regs_of(vs)))
    def accw(self, ad, vs):
        return self.add(Op(f"v_accvgpr_write_b32 {ad}, {fmt(vs)}", "valu", regs_of(ad), regs_of(vs)))
    def accr(self, vd, a):
        return self.add(Op(f"v_accvgpr_read_b32 {vd}, {a}", "valu", regs_of(vd), regs_of(a)))
    def mfma(self, d, a, b, c, name="v_mfma_f32_32x32x16_bf16"):
        cr = regs_of(c)
        op = Op(f"{name} {d}, {a}, {b}, {fmt(c)}", "mfma", regs_of(d), regs_of(a) + regs_of(b) + cr,
                srcc=cr, srcab=regs_of(a) + regs_of(b))
        return self.add(op)
    def s(self, name, dst, *srcs, nodst=False):
        if nodst:
            ops = (dst,) + srcs
            txt = f"{name} " + ", ".join(fmt(s) for s in ops)
            return self.add(Op(txt, "salu", ["scc"], [r for x in ops for r in regs_of(x)]))
        defs = regs_of(dst)
        uses = [r for x in srcs for r in regs_of(x)]
        txt = f"{name} {fmt(dst)}, " + ", ".join(fmt(s) for s in srcs)
        if not name.startswith(("s_mov", "s_cselect", "s_mul_i32", "s_getreg", "s_getpc")): defs = defs + ["scc"]
        if name.startswith(("s_cselect", "s_addc", "s_subb")): uses.append("scc")
        return self.add(Op(txt.rstrip(", "), "salu", defs, uses))
    def cmp(self, name, a, b):
        return self.add(Op(f"{name} {fmt(a)}, {fmt(b)}", "salu", ["scc"], regs_of(a) + regs_of(b)))
    def dsr(self, name, dst, addr, off=0):
        assert 0 <= off <= 65535, off
        return self.add(Op(f"{name} {dst}, {addr} offset:{off}", "dsr", regs_of(dst), regs_of(addr)))
    def dsw(self, name, addr, src, off=0, tag=None):
        assert 0 <= off <= 65535, off
        return self.add(Op(f"{name} {addr}, {src} offset:{off}", "dsw", [], regs_of(addr) + regs_of(src), tag=tag))
    def bload(self, name, dst, voff, srd, soff, off=0, flags="", tag=None, cond=False):
        assert 0 <= off <= 4095
        t = f"{name} {dst}, {voff}, {srd}, {fmt(soff)} offen" + (f" offset:{off}" if off else "") + (" " + flags if flags else "")
        return self.add(Op(t, "vld", regs_of(dst), regs_of(voff) + regs_of(srd) + regs_of(soff), tag=tag, cond=cond, cost=VMCOST))
    def bstore(self, name, src, voff, srd, soff, off=0, flags="", tag=None, cond=False):
        assert 0 <= off <= 4095
        t = f"{name} {src}, {voff}, {srd}, {fmt(soff)} offen" + (f" offset:{off}" if off else "") + (" " + flags if flags else "")
        wide = name.endswith(("x3", "x4"))
        return self.add(Op(t, "vstw" if wide else "vst", [], regs_of(src) + regs_of(voff) + regs_of(srd) + regs_of(soff), tag=tag, cond=cond,
                           srcc=regs_of(src), cost=VMCOST))
    def dma(self, voff, srd, soff, off=0, flags="", tag=None, cond=False):
        assert 0 <= off <= 4095
        t = f"buffer_load_dwordx4 {voff}, {srd}, {fmt(soff)} offen" + (f" offset:{off}" if off else "") + (" " + flags if flags else "") + " lds"
        return self.add(Op(t, "dma", [], regs_of(voff) + regs_of(srd) + regs_of(soff) + ["m0"], tag=tag, cond=cond, cost=VMCOST))
    def waitvm(self, tag):
        return self.add(Op("", "waitvm", tag=tag, cost=1))
    def waitvm_all(self):
        return self.add(Op("s_waitcnt vmcnt(0)", "drainvm"))
    def waitlds(self, tag=None):
        return self.add(Op("", "waitlds", tag=tag))
    def barrier(self):
        return self.add(Op("s_barrier", "barrier"))
    def raw(self, text, kind="salu", defs=(), uses=()):
        return self.add(Op(text, kind, defs, uses))
    def label(self, name):
        return self.add(Op(name + ":", "label", cost=0))
    def branch(self, name, target):
        return self.add(Op(f"{name} {target}", "branch", [], ["scc"] if "scc" in name else (["vcc"] if "vcc" in name else [])))
    def nop(self, n):
        return self.add(Op(f"s_nop {n}", "nop", cost=n + 1))
    def comment(self, t):
        return self.add(Op("; " + t, "comment", cost=0))


def resolve_waits(ops):
    out = []
    vmq = []
    ldq = []
    def emit_wait(vm=None, lg=None):
        parts = []
        if vm is not None: parts.append(f"vmcnt({min(vm, 63)})")
        if lg is not None: parts.append(f"lgkmcnt({min(lg, 15)})")
        out.append(Op("s_waitcnt " + " ".join(parts), "wait"))
    for op in ops:
        k = op.kind
        if k in ("comment", "label"):
            out.append(op); continue
        need_vm = -1; need_ld = -1
        touched = op.uses | op.defs
        if k == "waitvm":
            for i, e in enumerate(vmq):
                if e.tag == op.tag or (isinstance(op.tag, (list, tuple, set)) and e.tag in op.tag): need_vm = i
        elif k == "waitlds":
            for i, e in enumerate(ldq):
                if op.tag is None or e.tag == op.tag: need_ld = i
        else:
            for i, e in enumerate(vmq):
                if e.kind == "vld" and (e.defs & touched): need_vm = i
            for i, e in enumerate(ldq):
                if e.kind == "dsr" and (e.defs & touched): need_ld = i
        vm = lg = None
        if need_vm >= 0:
            vm = sum(1 for e in vmq[need_vm + 1:] if not e.cond)
            if vm > 63:
                vm = 63
            vmq = vmq[need_vm + 1:]
        if need_ld >= 0:
            lg = len(ldq) - need_ld - 1
            if lg > 15:
                lg = 15
                ldq = ldq[len(ldq) - 15:]
            else:
                ldq = ldq[need_ld + 1:]
        if vm is not None or lg is not None:
            emit_wait(vm, lg)
        if k in ("waitvm", "waitlds"):
            continue
        if k == "drainvm":
            vmq = []
        if k == "drainall":
            vmq = []; ldq = []
        if k == "smemwait":
            ldq = []
        out.append(op)
        if k in ("vld", "vst", "vstw", "dma"):
            vmq.append(op)
            assert sum(1 for e in vmq) <= 63, "vmcnt overflow (more than 63 outstanding)"
        if k in ("dsr", "dsw"):
            ldq.append(op)
    return out


def states(op):
    if op.kind in ("comment", "label") or op.skip: return 0
    if op.kind == "nop": return op.cost
    return 1

VALUISH = ("valu", "trans", "perm", "rfl")

def need_states(p, c):
    n = 0
    pk, ck = p.kind, c.kind
    vdefs = {r for r in p.defs if r[0] in "va" and r != "vcc"}
    if pk in VALUISH:
        if ck == "mfma" and (vdefs & c.uses): n = max(n, 2)
        if ck == "perm" and (vdefs & c.uses): n = max(n, 2)
        if ck == "rfl" and (vdefs & c.uses): n = max(n, 1)
        if pk == "trans" and ck in VALUISH + ("mfma",) and (vdefs & c.uses): n = max(n, 1 if ck != "mfma" else 2)
        sdefs = {r for r in p.defs if r[0] == "s" or r == "vcc"}
        if sdefs:
            if ck in VALUISH and (sdefs & c.uses): n = max(n, 2)
            if ck in ("vld", "vst", "vstw", "dma") and (sdefs & c.uses): n = max(n, 5)
            if ck in ("salu", "branch") and (sdefs & c.uses): n = max(n, 4)
    if pk == "mfma":
        if ck == "mfma":
            if p.defs & c.srcab: n = max(n, 12)
            if p.defs & c.srcc:
                n = max(n, 0 if (p.defs == c.srcc) else 10)
            elif p.defs & c.defs and p.defs != c.defs: n = max(n, 10)
            if (p.defs & c.defs) and not (p.defs == c.srcc): n = max(n, 10)
        elif ck in VALUISH + ("vld", "vst", "vstw", "dsr", "dsw", "dma"):
            if p.defs & (c.uses | c.defs): n = max(n, 12)
            if ck in VALUISH and (p.srcc & c.defs): n = max(n, 7)
            if ck in ("vld", "dsr") and (p.srcc & c.defs): n = max(n, 7)
    if pk == "vstw" and ck in VALUISH + ("dsr", "vld", "mfma") and (p.srcc & c.defs): n = max(n, 2)
    if pk == "salu" and "m0" in p.defs and ck == "dma": n = max(n, 1)
    return n

def insert_nops(ops):
    out = []
    hist = []
    for op in ops:
        if op.kind in ("comment",):
            out.append(op); continue
        if op.kind == "label":
            out.append(op); continue
        need = 0
        dist = 0
        for p in reversed(out):
            if p.kind in ("comment", "label"): continue
            if dist >= 12: break
            r = need_states(p, op) - dist
            if r > need: need = r
            dist += states(p)
        while need > 0:
            n = min(need, 16)
            out.append(Op(f"s_nop {n - 1}", "nop", cost=n))
            need -= n
        out.append(op)
    return out

def finalize(stream):
    ops = stream.ops if isinstance(stream, Stream) else stream
    ops = flatten(ops)
    ops = resolve_waits(ops)
    ops = insert_nops(ops)
    return ops

def to_text(ops):
    lines = []
    for o in ops:
        if o.kind == "label": lines.append(o.text)
        else: lines.append(o.text)
    return "\n".join(lines) + "\n"


def ready(op, hist, lds_dist=10):
    dist = 0
    for p in reversed(hist[-40:]):
        if p.kind in ("comment", "label"): continue
        if dist < 13 and need_states(p, op) > dist: return False
        if p.kind == "dsr" and dist < lds_dist and (p.defs & (op.uses | op.defs)): return False
        dist += states(p)
        if dist >= 16: break
    return True

def interleave(gaps, fillers, budget=6, out=None):
    out = [] if out is None else out
    ptr = [0] * len(fillers)
    def try_fill(gi, room):
        while room > 0:
            placed = False
            for fi, f in enumerate(fillers):
                if ptr[fi] >= len(f): continue
                op = f[ptr[fi]]
                if op.kind == "comment":
                    out.append(op); ptr[fi] += 1; placed = True; break
                if op.after > gi: continue
                if op.cost > room and not (op.cost == 2 and room == 1): continue
                if not ready(op, out): continue
                out.append(op); ptr[fi] += 1
                placed = True
                if op.kind == "mfma":
                    room = budget
                else:
                    room -= op.cost
                break
            if not placed: break
    for gi, g in enumerate(gaps):
        used = 0
        for op in g:
            out.append(op)
            if op.kind not in ("mfma", "comment", "label"): used += op.cost
        try_fill(gi, budget - used)
    left = [f[ptr[i]:] for i, f in enumerate(fillers)]
    return out, left

def interleave2(gaps, fillers, budget, budgets):
    out = []
    ptr = [0] * len(fillers)
    for gi, g in enumerate(gaps):
        b = budgets.get(gi, budget)
        sub = [f[ptr[i]:] for i, f in enumerate(fillers)]
        for f in sub:
            pass
        o, left = _one_gap(g, gi, sub, b, out, force=(gi in budgets))
        for i in range(len(fillers)): ptr[i] = len(fillers[i]) - len(left[i])
    return out, [f[ptr[i]:] for i, f in enumerate(fillers)]

def _one_gap(g, gi, fillers, budget, out, force=False):
    ptr = [0] * len(fillers)
    used = 0
    for op in g:
        out.append(op)
        if op.kind not in ("mfma", "comment", "label"): used += op.cost
    room = budget - used
    while room > 0:
        placed = False
        for fi, f in enumerate(fillers):
            if ptr[fi] >= len(f): continue
            op = f[ptr[fi]]
            if op.kind in ("comment", "label"):
                out.append(op); ptr[fi] += 1; placed = True; break
            if op.kind == "delay":
                ptr[fi] += 1
                if ptr[fi] < len(f): f[ptr[fi]].after = max(f[ptr[fi]].after, gi + op.cost)
                placed = True; break
            if op.after > gi + (1 if force else 0): continue
            if op.kind == "block":
                if not force and not ready(op.tag[0], out): continue
                out.extend(op.tag); ptr[fi] += 1; placed = True
                room -= op.cost
                break
            if op.cost > room and not (op.cost == 2 and room == 1): continue
            if not force and not ready(op, out): continue
            out.append(op); ptr[fi] += 1
            placed = True
            if op.kind == "mfma" and not force: room = 5
            else: room -= op.cost
            break
        if not placed: break
    return out, [f[ptr[i]:] for i, f in enumerate(fillers)]


def Block(ops, cost=None):
    ops = list(ops)
    b = Op("", "block", tag=ops, cost=cost if cost is not None else min(len(ops), 4))
    return b

def Delay(n):
    return Op("", "delay", cost=n)

def flatten(ops):
    out = []
    for o in ops:
        if o.kind == "block": out.extend(flatten(o.tag))
        elif o.kind == "delay": continue
        else: out.append(o)
    return out


def mix(compute, groups, every, start=0):
    out = []; gi = 0; acc = 0; nxt = start
    for op in compute:
        while gi < len(groups) and acc >= nxt:
            out.extend(groups[gi]); gi += 1; nxt = acc + every
            break
        out.append(op)
        acc += op.cost if op.kind not in ("comment", "label") else 0
        if op.kind == "mfma": acc += 7
    for g in groups[gi:]: out.extend(g)
    return out
```

```python
import sys, math
from asmgen import *

KNAME = "recurrent_scan__linear_kernel_hedgehog__glu_gated_reglu__prompt_kernel"
LOG2E = 1.4426950408889634

WS_H = 0
WS_O = 0x560000
WS_KV = 0x760000
WS_FL = 0x780000
WS_SIZE = 0x782000
WS_ST = 0x790000
FL_H, FL_O, FL_KV = 0, 16 * 128, 32 * 128
SPIN_LIMIT = 200000

sKA = S(0, 2); sWG = S(2); sT0 = S(3)
sPTR = S(4, 16)
sPTR2 = S(20, 4)
sPTR3 = S(24, 2)
rX, rQKV, rPHI, rWO, rG, rU, rD, rOUT, rDBG, rWS = [S(28 + 4 * i, 4) for i in range(10)]
sWave, sRB, sJ, sType, sHalf, sC64 = S(68), S(69), S(70), S(71), S(72), S(73)
sWl = S(74)
sXb0, sXb1 = S(75), S(76)
sSo, sSo2 = S(77), S(78)
sCol1 = S(79)
sColG = S(80)
sT1, sT2, sT3 = S(81), S(82), S(83)
sCnt = S(84)
sHb = S(85)
sNst = S(86)
sColV = S(87)
sPb0, sPb1 = S(88), S(89)
sHl = S(90)
sOl = S(91)
sKVb = S(92)
sOutb = S(93)
sSo3 = S(98)
sXl = S(99)
sMask = [S(4 + 2 * i, 2) for i in range(6)]
sEx = S(16, 2)

R = [i * 32768 for i in range(5)]
MISC = 144 * 1024

aX = A(0, 128)
aW = A(128, 32)
aPHI = A(160, 16)
NFR = 8
PD = 5
BUDGET = 5
KV_EXPOSED = 260


class Gen:
    def __init__(self, debug=None, prof=False):
        self.debug = debug
        self.prof = prof
        self.st = Stream()
        self.lab = 0

    def stamp(self, st, idx, block=False):
        if not self.prof: return
        x = Stream()
        x.raw("s_memrealtime s[20:21]", "salu", ["s20", "s21"], [])
        x.raw("s_waitcnt lgkmcnt(0)", "smemwait")
        x.raw(f"v_writelane_b32 v253, s20, {idx}", "valu", ["v253"], ["s20"])
        if block: st.add(Block(x.ops, 3))
        else: st.extend(x.ops)

    def csel(self, st, cmp, a, b, dst, t, f):
        x = Stream(); x.cmp(cmp, a, b); x.s("s_cselect_b32", dst, t, f)
        st.add(Block(x.ops, 2))

    def newlabel(self, p):
        self.lab += 1
        return f"L_{p}_{self.lab}"

    def srd(self, st, r, ptr, size):
        st.s("s_mov_b32", r[0], ptr[0]); st.s("s_mov_b32", r[1], ptr[1])
        st.s("s_mov_b32", r[2], size); st.s("s_mov_b32", r[3], 0x20000)

    def poll(self, st, soff, target, vaddr, vt, srd=None, wave0=True):
        srd = srd or rWS
        lo, le = self.newlabel("poll"), self.newlabel("pdone")
        n0 = len(st.ops)
        if wave0:
            st.cmp("s_cmp_lg_u32", sWave, 0); st.branch("s_cbranch_scc1", le)
        n1 = len(st.ops)
        st.s("s_mov_b32", sCnt, 0)
        st.label(lo)
        st.raw(f"buffer_load_dword {vt}, {vaddr}, {srd}, {soff} offen sc1", "salu", [], [])
        st.raw("s_waitcnt vmcnt(0)", "wait")
        st.readfirstlane(sT1, vt)
        st.cmp("s_cmp_ge_u32", sT1, target); st.branch("s_cbranch_scc1", le)
        st.s("s_add_u32", sCnt, sCnt, 1); st.cmp("s_cmp_lt_u32", sCnt, SPIN_LIMIT); st.branch("s_cbranch_scc1", lo)
        if wave0:
            for o in st.ops[n1:]: o.skip = True
        st.label(le)

    def head(self):
        st = self.st
        st.cmp("s_cmp_ge_u32", sWG, 256); st.branch("s_cbranch_scc1", "L_end")
        if self.prof:
            st.raw("s_memrealtime s[100:101]", "salu", ["s100", "s101"], [])
        st.raw(f"s_load_dwordx16 {sPTR}, {sKA}, 0", "salu", sPTR.regs(), [])
        st.raw(f"s_load_dwordx4 {sPTR2}, {sKA}, 64", "salu", sPTR2.regs(), [])
        st.raw(f"s_load_dwordx2 {sPTR3}, {sKA}, 80", "salu", sPTR3.regs(), [])
        vL = V(1)
        st.v("v_and_b32", vL, 63, V(0))
        st.v("v_lshrrev_b32", V(2), 6, V(0))
        st.readfirstlane(sWave, V(2))
        st.s("s_and_b32", sT1, sWG, 7)
        st.s("s_lshr_b32", sT2, sWG, 3)
        st.s("s_lshr_b32", sRB, sT1, 1); st.s("s_lshl_b32", sRB, sRB, 2)
        st.s("s_lshr_b32", sT3, sT2, 3); st.s("s_add_u32", sRB, sRB, sT3)
        st.s("s_and_b32", sHalf, sT1, 1)
        st.s("s_and_b32", sC64, sT2, 7)
        st.s("s_lshr_b32", sType, sC64, 2)
        st.s("s_and_b32", sT3, sC64, 3); st.s("s_lshl_b32", sJ, sHalf, 2); st.s("s_add_u32", sJ, sJ, sT3)
        self.vx = vx = [V(4 + q) for q in range(4)]
        lr, pos, tq, t = V(8), V(9), V(10), V(11)
        st.v("v_lshrrev_b32", lr, 4, vL); st.v("v_and_b32", pos, 15, vL)
        for q in range(4):
            st.v("v_add_u32", tq, 4 * q, lr)
            st.v("v_xor_b32", t, pos, tq); st.v("v_lshlrev_b32", t, 4, t)
            st.v("v_lshlrev_b32", tq, 10, tq); st.v("v_add_u32", vx[q], tq, t)
        st.s("s_lshl_b32", sWl, sWave, 10)
        st.s("s_lshl_b32", sXb0, sRB, 17); st.s("s_lshl_b32", sXl, sWave, 15); st.s("s_add_u32", sXb0, sXb0, sXl)
        st.s("s_add_u32", sXb1, sXb0, 16384)
        st.raw("s_waitcnt lgkmcnt(0)", "smemwait")
        if self.prof:
            st.raw("v_mov_b32 v253, 0", "valu", ["v253"], [])
            st.raw("v_writelane_b32 v253, s100, 0", "valu", ["v253"], ["s100"])
        self.srd(st, rX, sPTR[0:2], 2097152)

    def x_groups(self):
        gs = []
        for sl in range(4):
            for tg in range(8):
                x = Stream()
                x.s("s_add_u32", M0, sXl, sl * 8192 + tg * 1024 - sl * 256)
                x.dma(self.vx[tg & 3], rX, sXb0 if tg < 4 else sXb1, off=sl * 256, tag=("x", sl))
                gs.append(x.ops)
        return gs

    def setup_a(self, st):
        vL = V(1)
        self.srd(st, rQKV, sPTR[2:4], 512 * 3072)
        st.s("s_lshl_b32", sT2, sJ, 7)
        self.csel(st, "s_cmp_eq_u32", sType, 0, sT3, 1024, 0)
        st.s("s_add_u32", sCol1, sT2, sT3); st.s("s_add_u32", sColV, sT2, 2048)
        self.vWq = [V(20), V(21)]
        r8, ps, a, b = V(8), V(9), V(10), V(11)
        st.v("v_lshrrev_b32", r8, 3, vL); st.v("v_and_b32", ps, 7, vL)
        st.v("v_bfe_u32", a, r8, 1, 1); st.v("v_lshlrev_b32", a, 2, a); st.v("v_xor_b32", a, a, ps); st.v("v_lshlrev_b32", a, 4, a)
        st.s("s_lshl_b32", sT2, sWave, 3)
        st.v("v_add_u32", b, sT2, r8)
        st.s("s_mov_b32", sT3, 3072)
        st.v("v_mul_lo_u32", b, b, sT3)
        st.v("v_add_u32", self.vWq[0], a, b)
        st.v("v_add_u32", self.vWq[1], 32 * 3072, self.vWq[0])
        self.srd(st, rWS, sPTR3, WS_SIZE if not self.prof else 0x800000)
        self.srd(st, rPHI, sPTR[4:6], 16384)
        self.srd(st, rWO, sPTR[6:8], 512 * 1024)
        self.srd(st, rG, sPTR[10:12], 512 * 2752)
        self.srd(st, rU, sPTR[12:14], 512 * 2752)
        self.srd(st, rD, sPTR[14:16], 1376 * 1024)
        self.srd(st, rOUT, sPTR2[0:2], 2097152)
        self.srd(st, rDBG, sPTR2[2:4], 256)
        st.v("v_lshlrev_b32", V(22), 4, vL)

    def late_groups(self):
        vL = V(1)
        gs = []
        st = Stream()
        lz = self.newlabel("nozero")
        st.cmp("s_cmp_ge_u32", sWG, 16); st.branch("s_cbranch_scc1", lz)
        n0 = len(st.ops)
        z = V(44, 4); sL1, sL2 = S(14), S(15); t1, t2 = V(120), V(121)
        for i in range(4): st.v("v_mov_b32", z[i], 0)
        st.s("s_lshl_b32", sL1, sWG, 13); st.s("s_lshl_b32", sL2, sWave, 11); st.s("s_add_u32", sL1, sL1, sL2)
        st.s("s_add_u32", sL1, sL1, WS_KV)
        st.bstore("buffer_store_dwordx4", z, V(22), rWS, sL1, flags="sc1", cond=True)
        st.bstore("buffer_store_dwordx4", z, V(22), rWS, sL1, off=1024, flags="sc1", cond=True)
        st.v("v_lshrrev_b32", t1, 3, vL); st.v("v_min_u32", t1, 2, t1); st.v("v_lshlrev_b32", t1, 11, t1)
        st.v("v_and_b32", t2, 7, vL); st.v("v_lshlrev_b32", t2, 4, t2); st.v("v_add_u32", t1, t1, t2)
        st.s("s_lshl_b32", sL2, sWG, 7); st.s("s_add_u32", sL2, sL2, WS_FL)
        st.bstore("buffer_store_dwordx4", z, t1, rWS, sL2, flags="sc1", cond=True)
        for o in st.ops[n0:]: o.skip = True
        st.label(lz)
        gs.append(st.ops)
        for s in range(3):
            x = Stream(); self.dma128(x, rQKV, self.vWq, sCol1, s * 64 * 3072, R[4] + s * 8192, ("p1", s))
            gs.extend(split_dma(x.ops))
        x = Stream()
        x.s("s_and_b32", sT0, sWave, 1); x.s("s_lshl_b32", sT0, sT0, 10)
        x.s("s_lshl_b32", sSo3, sJ, 11); x.s("s_add_u32", sSo3, sSo3, sT0)
        x.s("s_add_u32", M0, sT0, R[4] + 24576)
        x.dma(V(22), rPHI, sSo3, tag="phi")
        gs.append(x.ops)
        x = Stream()
        lp = self.newlabel("pc")
        x.raw("s_getpc_b64 s[26:27]", "salu", ["s26", "s27"], [])
        x.label(lp)
        x.raw(f"s_sub_u32 s26, s26, {lp}-{KNAME}", "salu", ["s26", "scc"], ["s26"])
        x.raw("s_subb_u32 s27, s27, 0", "salu", ["s27", "scc"], ["s27", "scc"])
        x.s("s_lshr_b32", sSo3, sWG, 3); x.s("s_lshl_b32", sSo3, sSo3, 11)
        x.v("v_lshlrev_b32", V(23), 3, V(0)); x.v("v_add_u32", V(23), sSo3, V(23))
        x.raw(f"s_mov_b32 {sSo3}, L_codeend-{KNAME}-8", "salu", sSo3.regs(), [])
        x.v("v_min_u32", V(23), sSo3, V(23))
        x.add(Op("global_load_dwordx2 v[254:255], v23, s[26:27]", "vld", ["v254", "v255"], ["v23", "s26", "s27"], cost=VMCOST))
        gs.append(x.ops)
        return gs

    def dma128(self, st, srd, voffs, sbase, const, ldsaddr, tag):
        st.s("s_add_u32", sSo, sbase, const)
        for ii in range(2):
            st.s("s_add_u32", M0, sWl, ldsaddr + ii * 4096)
            st.dma(voffs[ii], srd, sSo, tag=tag)

    def stat_consts(self, st):
        vL = V(1)
        t, hf, tt = V(8), V(9), V(10)
        st.v("v_and_b32", t, 31, vL); st.v("v_lshrrev_b32", hf, 5, vL); st.v("v_and_b32", tt, 15, t)
        self.vxr = vxr = [V(24 + a) for a in range(8)]
        st.v("v_lshlrev_b32", V(11), 8, t)
        st.v("v_add_u32", V(11), sXl, V(11))
        for a in range(8):
            st.v("v_add_u32", V(12), 2 * a, hf); st.v("v_xor_b32", V(12), V(12), tt)
            st.v("v_lshlrev_b32", V(12), 4, V(12)); st.v("v_add_u32", vxr[a], V(11), V(12))
        self.vOnes = V(32, 4); self.vSel = V(36, 8)
        for i in range(4): st.v("v_mov_b32", self.vOnes[i], 0x3f803f80)

    def stat_consts2(self, st):
        vL = V(1)
        t, hf = V(8), V(9)
        st.v("v_and_b32", t, 31, vL); st.v("v_lshrrev_b32", hf, 5, vL)
        st.v("v_lshlrev_b32", V(12), 2, hf); st.v("v_sub_u32", V(12), t, V(12))
        st.v("v_mov_b32", V(14), 0x3f80); st.v("v_mov_b32", V(15), 0x3f800000)
        for ab in range(2):
            for q in range(4):
                row0 = 16 * ab + 8 * (q >> 1) + 2 * (q & 1)
                d = self.vSel[4 * ab + q]
                st.v("v_cmp_eq_u32", VCC, row0, V(12))
                st.v("v_cndmask_b32", d, 0, V(14))
                st.v("v_cmp_eq_u32", VCC, row0 + 1, V(12))
                st.v("v_cndmask_b32", d, d, V(15))
        for i in range(5):
            st.v("v_and_b32", V(13), 1 << i, t)
            st.v("v_cmp_ne_u32", sMask[i], 0, V(13))
        st.v("v_mov_b32", V(14), 0); st.v("v_mov_b32", V(15), 0)
        st.v("v_mov_b32", V(13), R[4] + 26624)
        st.dsw("ds_write_b64", V(13), V(14, 2))

    def startup(self, path_setup):
        st = self.st
        xg = self.x_groups()
        a = Stream(); self.stat_consts(a); self.setup_a(a)
        b = Stream(); self.stat_consts2(b); path_setup(b)
        NX0 = 24
        take = max(0, NX0 * 10 - len(a.ops))
        comp = a.ops + b.ops[:take]
        rest = b.ops[take:]
        st.extend(xg[0])
        st.extend(mix(comp, xg[1:NX0], every=10, start=10))
        self.stamp(st, 1)
        late = xg[NX0:] + self.late_groups()
        self.vD1 = V(48, 16); self.vD2 = V(64, 16)
        def reads(x, sl):
            x.waitvm(("x", sl))
            for a_ in range(8):
                s = sl * 8 + a_
                x.dsr("ds_read_b128", aX[4 * s:4 * s + 4], self.vxr[a_], off=sl * 8192)
        gaps = []
        for sl in range(4):
            for a_ in range(8):
                s = sl * 8 + a_
                f = aX[4 * s:4 * s + 4]
                x = Stream(); x.mfma(self.vD1, self.vOnes, f, self.vD1 if s else 0); gaps.append(x.ops)
                x = Stream(); x.mfma(self.vD2, f, f, self.vD2 if s else 0); gaps.append(x.ops)
        for sl in range(1, 4):
            x = Stream(); reads(x, sl); gaps[16 * sl - 5].extend(x.ops)
        gi = 0
        for grp in late:
            gaps[gi].extend(grp); gi += 2
        reads(st, 0)
        self.stamp(st, 2)
        out, left = interleave2(gaps, [rest], 6, {})
        st.extend(out); st.extend(left[0])
        self.stamp(st, 3)
        st.waitvm("phi")
        st.waitlds()
        st.barrier()
        self.stamp(st, 4)

    def stats_final(self, st):
        D1, D2 = self.vD1, self.vD2
        self.vRstd, self.vRs, self.vR2 = V(2), V(3), V(4)
        for r in range(16): st.v("v_mul_f32", D1[r], -1.0 / 512, D1[r])
        E = V(80, 8)
        for k in range(8): st.v("v_cndmask_b32", E[k], D2[2 * k], D2[2 * k + 1], sMask[0])
        for k in range(4): st.v("v_cndmask_b32", E[k], E[2 * k], E[2 * k + 1], sMask[1])
        for k in range(2): st.v("v_cndmask_b32", E[k], E[2 * k], E[2 * k + 1], sMask[3])
        st.v("v_cndmask_b32", E[0], E[0], E[1], sMask[4])
        st.v("v_mov_b32", E[1], E[0])
        st.swap32(E[0], E[1])
        st.v("v_cndmask_b32", E[0], E[0], E[1], sMask[2])
        st.v("v_mul_f32", E[1], D1[0], D1[0])
        st.v("v_mul_f32", E[0], 1.0 / 512, E[0])
        st.v("v_sub_f32", E[0], E[0], E[1])
        st.v("v_max_f32", E[0], 0, E[0])
        st.v("v_add_f32", E[0], 1e-5, E[0])
        st.v("v_rsq_f32", self.vRstd, E[0])
        st.v("v_mul_f32", self.vRs, LOG2E, self.vRstd)
        st.v("v_mul_f32", self.vR2, self.vRstd, self.vRstd)

    def centering_gaps(self):
        gaps = []
        x = Stream(); self.phi_frags(x); self.stats_final(x)
        ops = x.ops
        for i in range(0, len(ops), 12): gaps.append(ops[i:i + 12])
        C = self.vD1
        Ds = [V(64, 16), V(80, 16), V(96, 16)]
        T = V(112, 8)
        def mfa(st, u): st.mfma(Ds[u % 3], self.vSel[0:4], aX[8 * u:8 * u + 4], C)
        def mfb(st, u): st.mfma(Ds[u % 3], self.vSel[4:8], aX[8 * u + 4:8 * u + 8], Ds[u % 3])
        x = Stream(); mfa(x, 0); mfb(x, 0); mfa(x, 1); mfb(x, 1); gaps.append(x.ops)
        for u in range(16):
            D = Ds[u % 3]
            x = Stream()
            if u + 2 < 16: mfa(x, u + 2)
            for r in range(8): x.v("v_cvt_pk_bf16_f32", T[r], D[2 * r], D[2 * r + 1])
            gaps.append(x.ops)
            x = Stream()
            if u + 2 < 16: mfb(x, u + 2)
            for r in range(8): x.accw(aX[8 * u + r], T[r])
            gaps.append(x.ops)
        x = Stream(); x.waitlds(); self.stamp(x, 5); gaps.append(x.ops)
        return gaps

    def phi_frags(self, st):
        vL = V(1)
        i16, r, cc, g16, hf = V(8), V(9), V(10), V(11), V(12)
        st.v("v_and_b32", i16, 15, vL); st.v("v_lshrrev_b32", r, 2, i16); st.v("v_and_b32", cc, 3, i16)
        st.v("v_bfe_u32", g16, vL, 4, 1); st.v("v_lshrrev_b32", hf, 5, vL)
        base = V(13)
        st.v("v_lshlrev_b32", base, 2, hf); st.v("v_add_u32", base, base, r); st.v("v_lshlrev_b32", base, 5, base)
        st.v("v_lshlrev_b32", V(14), 3, cc); st.v("v_add_u32", base, base, V(14))
        st.v("v_add_u32", base, R[4] + 24576, base)
        zaddr = V(15)
        st.v("v_mov_b32", zaddr, R[4] + 26624)
        ad = [V(16), V(17)]
        for par in range(2):
            st.v("v_cmp_eq_u32", VCC, par, g16)
            for hh in range(2):
                hd = 2 * hh + par
                for q in range(2):
                    st.v("v_add_u32", V(14), hd * 512 + q * 256, base)
                    st.v("v_cndmask_b32", ad[q], zaddr, V(14))
                    st.dsr("ds_read_b64_tr_b16", aPHI[4 * hd + 2 * q:4 * hd + 2 * q + 2], ad[q])

    def lane_bits(self, st):
        vL = V(1)
        self.b_r, self.b_cc, self.b_g, self.b_hf = V(8), V(9), V(10), V(11)
        st.v("v_and_b32", V(12), 15, vL); st.v("v_lshrrev_b32", self.b_r, 2, V(12)); st.v("v_and_b32", self.b_cc, 3, V(12))
        st.v("v_bfe_u32", self.b_g, vL, 4, 1); st.v("v_lshrrev_b32", self.b_hf, 5, vL)

    def cc_part(self, st, d, tmp):
        st.v("v_lshrrev_b32", d, 1, self.b_cc); st.v("v_lshlrev_b32", d, 4, d)
        st.v("v_and_b32", tmp, 1, self.b_cc); st.v("v_lshlrev_b32", tmp, 3, tmp); st.v("v_add_u32", d, d, tmp)

    def addr128(self, st, dst, wins, rowmul, xor_reg=None):
        a, b, t = V(12), V(13), V(14)
        self.cc_part(st, a, t)
        st.v("v_lshlrev_b32", t, 5, self.b_g); st.v("v_add_u32", a, a, t)
        st.v("v_mul_u32_u24", t, rowmul, self.b_hf); st.v("v_add_u32", t, t, self.b_r)
        st.v("v_lshlrev_b32", t, 7, t); st.v("v_add_u32", a, a, t)
        st.v("v_bfe_u32", b, self.b_r, 1, 1)
        if xor_reg is not None: st.v("v_xor_b32", b, xor_reg, b)
        for c in range(2):
            st.v("v_xor_b32", t, c, b); st.v("v_lshlrev_b32", t, 6, t)
            first = None
            for wi in wins:
                if first is None:
                    st.v("v_add_u32", dst[c][wi], a, t)
                    if wi: st.v("v_add_u32", dst[c][wi], wi * 65536, dst[c][wi])
                    first = wi
                else:
                    st.v("v_add_u32", dst[c][wi], (wi - first) * 65536, dst[c][first])

    def softmax(self, st, P, T, m):
        s = self.vRs
        mx, nm, c, d, u, w = [m[i] for i in range(6)]
        st.v("v_max3_f32", mx, P[0], P[1], P[2]); st.v("v_max3_f32", nm, Neg(P[0]), Neg(P[1]), Neg(P[2]))
        st.v("v_max3_f32", mx, mx, P[3], P[4]); st.v("v_max3_f32", nm, nm, Neg(P[3]), Neg(P[4]))
        st.v("v_max3_f32", mx, mx, P[5], P[6]); st.v("v_max3_f32", nm, nm, Neg(P[5]), Neg(P[6]))
        st.v("v_max_f32", mx, mx, P[7]); st.v("v_max_f32", nm, nm, Neg(P[7]))
        st.swap32(mx, nm)
        st.v("v_max_f32", c, mx, nm); st.v("v_mov_b32", d, c)
        st.swap32(c, d)
        st.v("v_mul_f32", u, c, s); st.v("v_mul_f32", w, d, s)
        for r in range(8):
            st.v("v_fma_f32", T[r], P[r], s, Neg(u))
            st.v("v_fma_f32", P[r], Neg(P[r]), s, Neg(w))
        for r in range(8):
            st.v("v_exp_f32", T[r], T[r]); st.v("v_exp_f32", P[r], P[r])
        st.v("v_add_f32", mx, T[0], T[1]); st.v("v_add_f32", nm, P[0], P[1])
        for r in range(2, 8):
            st.v("v_add_f32", mx, mx, T[r]); st.v("v_add_f32", nm, nm, P[r])
        st.swap32(mx, nm)
        st.v("v_add_f32", c, mx, nm); st.v("v_mov_b32", d, c)
        st.swap32(c, d)
        st.v("v_rcp_f32", u, c); st.v("v_rcp_f32", w, d)
        for r in range(8):
            st.v("v_mul_f32", T[r], T[r], u); st.v("v_mul_f32", P[r], P[r], w)
        for q in range(4): st.v("v_cvt_pk_bf16_f32", P[q], P[2 * q], P[2 * q + 1])
        for q in range(4): st.v("v_cvt_pk_bf16_f32", P[4 + q], T[2 * q], T[2 * q + 1])

    def phi_logits(self, st, acc, tmp8, c):
        for q in range(8): st.v("v_cvt_pk_bf16_f32", tmp8[q], acc[2 * q], acc[2 * q + 1])
        st.mfma(acc, aPHI[8 * c:8 * c + 4], tmp8[0:4], 0)
        st.mfma(acc, aPHI[8 * c + 4:8 * c + 8], tmp8[4:8], acc)


class Stage:
    def __init__(self, name, dma_ops, tag):
        self.name, self.dma_ops, self.tag = name, dma_ops, tag
        self.issue_after = None

class Item:
    def __init__(self, acc, xf, stage, reads, first):
        self.acc, self.xf, self.stage, self.reads, self.first = acc, xf, stage, reads, first

def build_gaps(items, pending, frag0=0, pre_barrier=None, pregaps=None, pairwait=True):
    pregaps = pregaps or []
    n0 = len(pregaps)
    n = len(items)
    bar_gap = {}
    def frag(i):
        k = (frag0 + i) % NFR
        return aW[4 * k:4 * k + 4]
    def emit_reads(st, i):
        it = items[i]; f = frag(i)
        for q in range(2):
            a, off = it.reads[q]
            st.dsr("ds_read_b64_tr_b16", f[2 * q:2 * q + 2], a, off=off)
    def stage_entry(st, i):
        sg = items[i].stage
        if pre_barrier and sg.name in pre_barrier:
            st.extend(pre_barrier[sg.name])
        st.waitvm(sg.tag); st.barrier()
    seen = set()
    pro = Stream()
    for i in range(min(PD, n)):
        if items[i].stage.name not in seen:
            seen.add(items[i].stage.name); stage_entry(pro, i); bar_gap[items[i].stage.name] = n0
        emit_reads(pro, i)
    gaps = list(pregaps) + [pro.ops]
    off = len(gaps)
    for i in range(n):
        st = Stream()
        it = items[i]
        m = st.mfma(it.acc, frag(i), it.xf, 0 if it.first else it.acc)
        if pairwait and i % 2 == 0 and i + 1 < n:
            m.uses = m.uses | set(frag(i + 1).regs())
        j = i + PD
        if j < n:
            if items[j].stage.name not in seen:
                seen.add(items[j].stage.name); stage_entry(st, j); bar_gap[items[j].stage.name] = off + i
            emit_reads(st, j)
        gaps.append(st.ops)
    nextfree = 0
    for stage, after, spacing in pending:
        if after is None: g = 0
        elif isinstance(after, int): g = after
        else: g = bar_gap[after]
        g = max(g, nextfree)
        for grp in split_dma(stage.dma_ops):
            assert g < len(gaps), "no room for DMA " + stage.name
            if stage.name in bar_gap: assert g < bar_gap[stage.name], ("late DMA", stage.name, g, bar_gap[stage.name])
            gaps[g].extend(grp)
            g += spacing
        nextfree = g
    return gaps, off, bar_gap

def split_dma(ops):
    groups, cur = [], []
    for o in ops:
        cur.append(o)
        if o.kind == "dma":
            groups.append(cur); cur = []
    if cur: groups[-1].extend(cur)
    return groups


sW2 = S(94)
sKh, sI = S(95), S(96)
sOb = S(97)

class Main(Gen):
    vWd = [V(233), V(234)]
    vP = [[V(235), V(236), V(237)], [V(238), V(239), V(240)]]
    vL16 = V(241)
    vZero = V(242)

    def p2_setup(self, st):
        vL = V(1)
        st.s("s_lshr_b32", sKh, sWave, 1); st.s("s_and_b32", sI, sWave, 1)
        st.s("s_lshl_b32", sW2, sWave, 11)
        st.v("v_mov_b32", V(15), sKh)
        self.addr128(st, self.vP, [0, 1, 2], 4, xor_reg=V(15))
        st.s("s_lshl_b32", sT1, sKh, 13)
        for a in range(2):
            for wi in range(3): st.v("v_add_u32", self.vP[a][wi], sT1, self.vP[a][wi])
        r8, ps, a_, b_ = V(12), V(13), V(14), V(15)
        st.v("v_lshrrev_b32", r8, 3, vL); st.v("v_and_b32", ps, 7, vL)
        st.v("v_bfe_u32", a_, r8, 1, 1); st.v("v_lshlrev_b32", a_, 2, a_); st.v("v_xor_b32", a_, a_, ps); st.v("v_lshlrev_b32", a_, 4, a_)
        st.s("s_lshl_b32", sT1, sWave, 4)
        st.v("v_add_u32", b_, sT1, r8); st.v("v_lshlrev_b32", b_, 10, b_)
        st.v("v_add_u32", self.vWd[0], a_, b_); st.v("v_add_u32", self.vWd[1], 8 * 1024, self.vWd[0])
        st.s("s_lshl_b32", sPb0, sC64, 7)
        st.v("v_lshlrev_b32", self.vL16, 4, vL)
        st.v("v_mov_b32", self.vZero, 0)
        st.s("s_lshl_b32", sT1, sRB, 2); st.s("s_lshl_b32", sT2, sHalf, 1); st.s("s_add_u32", sT1, sT1, sT2); st.s("s_add_u32", sT1, sT1, sI)
        st.s("s_mul_i32", sHl, sT1, 86); st.s("s_mul_i32", sT2, sKh, 43); st.s("s_add_u32", sHl, sHl, sT2); st.s("s_lshl_b32", sHl, sHl, 10)
        st.s("s_lshl_b32", sOl, sT1, 5); st.s("s_lshl_b32", sT2, sKh, 4); st.s("s_add_u32", sOl, sOl, sT2); st.s("s_lshl_b32", sOl, sOl, 10)
        st.s("s_add_u32", sOl, sOl, WS_O)

    def p2_stage(self, stn, sreg=None):
        sreg = sreg or sSo2
        st = Stream()
        slot = (stn % 9) * 16384
        for kh in range(2):
            if stn < 11:
                srd, const = rD, (43 * kh + 4 * stn) * 16384
            else:
                srd, const = rWO, (16 * kh + 4 * (stn - 11)) * 16384
            st.s("s_add_u32", sreg, sPb0, const)
            for hh in range(2):
                st.s("s_add_u32", M0, sW2, slot + kh * 8192 + hh * 1024)
                st.dma(self.vWd[hh], srd, sreg, tag=("p2", stn))
        return Stage(f"P{stn}", st.ops, ("p2", stn))

    def stage128(self, name, srd, sbase, const, lds):
        st = Stream(); self.dma128(st, srd, self.vWq, sbase, const, lds, name)
        return Stage(name, st.ops, name)

    def issue(self, st, stage):
        st.extend(stage.dma_ops)

    def gate_add(self, st):
        l = self.newlabel("nogate")
        st.cmp("s_cmp_ge_u32", sWG, 16); st.branch("s_cbranch_scc1", l)
        n0 = len(st.ops)
        st.cmp("s_cmp_lg_u32", sWave, 0); st.branch("s_cbranch_scc1", l)
        self.flag_add_body(st, rDBG, 0)
        for o in st.ops[n0:]: o.skip = True
        st.label(l)

    def flag_add_body(self, st, srd, soff):
        st.raw("s_mov_b64 exec, 1", "salu", ["exec"], [])
        st.v("v_mov_b32", V(8), 0); st.v("v_mov_b32", V(9), 1)
        st.add(Op(f"buffer_atomic_add v9, v8, {srd}, {fmt(soff)} offen sc1", "vst", [], ["v8", "v9"] + srd.regs() + regs_of(soff), cond=True))
        st.raw("s_mov_b64 exec, -1", "salu", ["exec"], [])

    def flag_add(self, st, soff):
        l = self.newlabel("noflag")
        st.cmp("s_cmp_lg_u32", sWave, 0); st.branch("s_cbranch_scc1", l)
        n0 = len(st.ops)
        self.flag_add_body(st, rWS, soff)
        for o in st.ops[n0:]: o.skip = True
        st.label(l)

    def gate_check(self, st, vt):
        a = Stream(); a.bload("buffer_load_dword", vt, self.vZero, rDBG, 0, flags="sc1")
        b = Stream()
        l = self.newlabel("gateok")
        b.readfirstlane(sT3, vt); b.cmp("s_cmp_ge_u32", sT3, 16); b.branch("s_cbranch_scc1", l)
        n0 = len(b.ops)
        self.poll(b, 0, 16, self.vZero, vt, srd=rDBG, wave0=False)
        for o in b.ops[n0:]: o.skip = True
        b.label(l)
        return a.ops, b.ops

    def gu_epilogue(self, st, acc, nch, T):
        for c in range(nch):
            a = acc[16 * c:16 * c + 16]
            t = T[4 * (c & 1):4 * (c & 1) + 4]
            for r in range(8): st.v("v_max_f32", a[r], 0, a[r])
            for r in range(8): st.v("v_mul_f32", a[r], a[r], a[8 + r])
            for q in range(4): st.v("v_cvt_pk_bf16_f32", t[q], a[2 * q], a[2 * q + 1])
            if c == 4: st.s("s_add_u32", sHb, sHb, 4096)
            if c == 6:
                l = self.newlabel("nost")
                st.cmp("s_cmp_ge_u32", sJ, 6); st.branch("s_cbranch_scc1", l)
                o = st.bstore("buffer_store_dwordx4", t, self.vL16, rWS, sHb, off=(c & 3) * 1024, flags="sc1", tag="h", cond=True)
                o.skip = True
                st.label(l)
            else:
                st.bstore("buffer_store_dwordx4", t, self.vL16, rWS, sHb, off=(c & 3) * 1024, flags="sc1", tag="h")

    def publish_h(self, st, stages):
        self.stamp(st, 9)
        for s in stages: self.issue(st, s)
        st.waitvm("h")
        self.stamp(st, 10)
        st.barrier()
        st.s("s_lshl_b32", sT2, sRB, 7); st.s("s_add_u32", sT2, sT2, WS_FL + FL_H)
        self.flag_add(st, sT2)

    def q_path(self):
        st = self.st
        st.label("L_qpath")
        accQ = V(32, 32); accG = V(64, 112)
        T8, m6, tmp8 = V(176, 8), V(184, 6), V(190, 8)
        vA = [{0: V(200), 2: V(201)}, {0: V(202), 2: V(203)}]
        vGU = [[V(204 + 3 * c + w) for w in range(3)] for c in range(7)]
        vDG = [[V(225 + 4 * iu + ii) for ii in range(4)] for iu in range(2)]
        vL = V(1)
        def setup(st):
            st.s("s_mul_i32", sT1, sJ, 7); st.s("s_add_u32", sT1, sT1, 32)
            self.csel(st, "s_cmp_eq_u32", sJ, 7, sT1, 80, sT1)
            st.s("s_lshl_b32", sColG, sT1, 5)
            st.s("s_lshl_b32", sT2, sRB, 2); st.s("s_add_u32", sT2, sT2, sWave); st.s("s_mul_i32", sT2, sT2, 86)
            st.s("s_add_u32", sT2, sT2, sT1); st.s("s_lshl_b32", sHb, sT2, 10)
            lr, pos, a, b = V(8), V(9), V(10), V(11)
            st.v("v_lshrrev_b32", lr, 4, vL); st.v("v_and_b32", pos, 15, vL)
            st.v("v_lshlrev_b32", a, 1, lr); st.v("v_xor_b32", pos, pos, a)
            st.s("s_lshl_b32", sT1, sWave, 2); st.v("v_add_u32", b, sT1, lr)
            st.s("s_mov_b32", sT2, 2752); st.v("v_mul_lo_u32", b, b, sT2)
            for iu in range(2):
                st.v("v_xor_b32", a, 8 * iu, pos); st.v("v_min_u32", a, 13, a); st.v("v_lshlrev_b32", a, 4, a)
                st.v("v_add_u32", vDG[iu][0], a, b)
                for ii in range(1, 4): st.v("v_add_u32", vDG[iu][ii], ii * 16 * 2752, vDG[iu][0])
            self.lane_bits(st)
            self.addr128(st, vA, [0, 2], 8)
            a, t = V(12), V(13)
            self.cc_part(st, a, t)
            st.v("v_lshlrev_b32", t, 3, self.b_hf); st.v("v_add_u32", t, t, self.b_r); st.v("v_lshlrev_b32", t, 8, t); st.v("v_add_u32", a, a, t)
            st.v("v_lshlrev_b32", t, 14, self.b_g); st.v("v_add_u32", a, a, t)
            st.v("v_lshlrev_b32", V(14), 2, self.b_g)
            for c in range(7):
                st.v("v_xor_b32", t, c, self.b_r); st.v("v_xor_b32", t, t, V(14)); st.v("v_lshlrev_b32", t, 5, t)
                st.v("v_add_u32", vGU[c][0], a, t)
                st.v("v_add_u32", vGU[c][1], 65536, vGU[c][0]); st.v("v_add_u32", vGU[c][2], 131072, vGU[c][0])
            self.p2_setup(st)
        self.startup(setup)
        def gstage(s, lds):
            x = Stream()
            x.s("s_add_u32", sSo, sColG, s * 64 * 2752)
            for ii in range(4):
                for iu in range(2):
                    x.s("s_add_u32", M0, sWl, lds + iu * 16384 + ii * 4096)
                    x.dma(vDG[iu][ii], rU if iu else rG, sSo, tag=f"G{s}")
            return Stage(f"G{s}", x.ops, f"G{s}")
        qlds = [R[4], R[4] + 8192, R[4] + 16384, R[0], R[0] + 8192, R[0] + 16384, R[0] + 24576, R[4] + 24576]
        glds = [R[1], R[2], R[3], R[0], R[4], R[1], R[2], R[3]]
        Q = [self.stage128(f"Q{s}", rQKV, sCol1, s * 64 * 3072, qlds[s]) for s in range(8)]
        for s in range(3): Q[s].tag = ("p1", s)
        G = [gstage(s, glds[s]) for s in range(8)]
        self.gate_add(st)
        pre = self.centering_gaps()
        items = []
        for s in range(8):
            for ks in range(4):
                for c in range(2):
                    ad = qlds[s] + ks * 16 * 128
                    rd = [(vA[c][(ad + q * 512) >> 16], (ad + q * 512) & 0xffff) for q in range(2)]
                    k = 4 * s + ks
                    items.append(Item(accQ[16 * c:16 * c + 16], aX[4 * k:4 * k + 4], Q[s], rd, k == 0))
        nq = len(items)
        for s in range(8):
            for ks in range(4):
                for c in range(7):
                    ad = glds[s] + ks * 16 * 256
                    rd = [(vGU[c][(ad + q * 1024) >> 16], (ad + q * 1024) & 0xffff) for q in range(2)]
                    k = 4 * s + ks
                    items.append(Item(accG[16 * c:16 * c + 16], aX[4 * k:4 * k + 4], G[s], rd, k == 0))
        P = {i: self.p2_stage(i) for i in range(15)}
        SP = 3
        pend = [(Q[3], 0, 4), (Q[4], None, 4), (Q[5], None, 4), (Q[6], None, 4), (G[0], None, SP), (Q[7], "Q0", SP),
                (G[1], None, SP), (G[2], None, SP), (G[3], "G0", SP), (G[4], "G1", SP), (G[5], "G2", SP), (G[6], "G3", SP),
                (G[7], "G4", SP), (P[0], "G5", 2), (P[1], "G5", 2), (P[8], "G6", 2), (P[2], "G7", 2), (P[3], "G7", 2)]
        gaps, off, bar = build_gaps(items, pend, pregaps=pre)
        nq += off
        f = Stream()
        gi, gc = self.gate_check(f, V(198))
        for c in range(2): self.phi_logits(f, accQ[16 * c:16 * c + 16], tmp8, c)
        for hd in range(4): self.softmax(f, accQ[8 * hd:8 * hd + 8], T8, m6)
        for o in f.ops: o.after = nq
        gaps[nq + 8].extend(gi)
        if self.prof:
            y = Stream(); self.stamp(y, 6); gaps[nq - 1].extend(y.ops)
        out, left = interleave2(gaps, [f.ops], BUDGET, {})
        st.extend(out); st.extend(left[0])
        st.extend(gc)
        self.stamp(st, 8)
        st.barrier()
        self.gu_epilogue(st, accG, 7, T8)
        self.publish_h(st, [P[i] for i in range(4, 8)])
        self.ostep(st, accQ)

    def ostep(self, st, phiq):
        D = V(64, 16); Af = V(80, 8); Ds = [V(96, 16), V(112, 16)]; T = V(128, 8)
        st.s("s_lshl_b32", sT2, sJ, 7); st.s("s_add_u32", sT2, sT2, WS_FL + FL_KV)
        self.poll(st, sT2, 16, self.vZero, V(198))
        st.barrier()
        self.stamp(st, 7)
        st.s("s_lshl_b32", sT1, sJ, 2); st.s("s_add_u32", sT1, sT1, sWave); st.s("s_lshl_b32", sT1, sT1, 12); st.s("s_add_u32", sT1, sT1, WS_KV)
        st.v("v_lshlrev_b32", V(8), 2, V(1))
        for r in range(16): st.bload("buffer_load_dword", D[r], V(8), rWS, sT1, off=r * 256, flags="sc1")
        for q in range(8): st.v("v_cvt_pk_bf16_f32", Af[q], D[2 * q], D[2 * q + 1])
        st.s("s_lshl_b32", sT2, sWave, 11)
        st.v("v_add_u32", V(9), sT2, self.vL16); st.v("v_add_u32", V(9), MISC + 1024, V(9))
        st.dsw("ds_write_b128", V(9), Af[0:4]); st.dsw("ds_write_b128", V(9), Af[4:8], off=1024)
        st.waitlds(); st.barrier()
        st.v("v_add_u32", V(10), MISC + 1024, self.vL16)
        fr = A(176, 32)
        for hd in range(4):
            for pn in range(2): st.dsr("ds_read_b128", fr[8 * hd + 4 * pn:8 * hd + 4 * pn + 4], V(10), off=hd * 2048 + pn * 1024)
        st.s("s_lshl_b32", sT1, sRB, 2); st.s("s_add_u32", sT1, sT1, sWave); st.s("s_lshl_b32", sT1, sT1, 5)
        st.s("s_lshl_b32", sT2, sJ, 2); st.s("s_add_u32", sT1, sT1, sT2); st.s("s_lshl_b32", sOb, sT1, 10); st.s("s_add_u32", sOb, sOb, WS_O)
        def mm(hd):
            d = Ds[hd & 1]; p = phiq[8 * hd:8 * hd + 8]
            st.mfma(d, fr[8 * hd:8 * hd + 4], p[4:8], 0)
            st.mfma(d, fr[8 * hd + 4:8 * hd + 8], p[0:4], d)
        mm(0); mm(1)
        for hd in range(4):
            d = Ds[hd & 1]; t = T[4 * (hd & 1):4 * (hd & 1) + 4]
            st.v("v_add_f32", d[8], 1e-6, d[8]); st.v("v_rcp_f32", d[8], d[8])
            for r in range(8): st.v("v_mul_f32", d[r], d[r], d[8])
            for q in range(4): st.v("v_cvt_pk_bf16_f32", t[q], d[2 * q], d[2 * q + 1])
            if hd + 2 < 4: mm(hd + 2)
            st.bstore("buffer_store_dwordx4", t, self.vL16, rWS, sOb, off=hd * 1024, flags="sc1", tag="o")
        st.waitvm("o"); st.barrier()
        st.s("s_lshl_b32", sT2, sRB, 7); st.s("s_add_u32", sT2, sT2, WS_FL + FL_O)
        self.flag_add(st, sT2)

    def kv_path(self):
        st = self.st
        st.label("L_kvpath")
        accK = V(32, 32); accV = V(64, 32); accG = V(96, 64); kvD = V(160, 16)
        T8, m6, tmp8 = V(176, 8), V(184, 6), V(190, 8)
        vA = [{0: V(200), 1: V(201), 2: V(202)}, {0: V(203), 1: V(204), 2: V(205)}]
        vGU = [[V(206 + 2 * c + w) for w in range(2)] for c in range(4)]
        vDG = [[V(214 + 2 * iu + ii) for ii in range(2)] for iu in range(2)]
        vKw, vVw, vOw = V(218), V(219), V(220)
        vKr, vVr = [V(221), V(222)], [V(223), V(224)]
        vL = V(1)
        PHI, VB = R[4], R[1]
        def setup(st):
            st.s("s_lshl_b32", sColG, sJ, 7)
            st.s("s_lshl_b32", sT2, sRB, 2); st.s("s_add_u32", sT2, sT2, sWave); st.s("s_mul_i32", sT2, sT2, 86)
            st.s("s_lshl_b32", sT1, sJ, 2); st.s("s_add_u32", sT2, sT2, sT1); st.s("s_lshl_b32", sHb, sT2, 10)
            r8, ps, a, b = V(8), V(9), V(10), V(11)
            st.v("v_lshrrev_b32", r8, 3, vL); st.v("v_and_b32", ps, 7, vL)
            st.v("v_bfe_u32", a, r8, 1, 1); st.v("v_lshlrev_b32", a, 1, a); st.v("v_xor_b32", ps, ps, a)
            st.s("s_lshl_b32", sT1, sWave, 3); st.v("v_add_u32", b, sT1, r8)
            st.s("s_mov_b32", sT2, 2752); st.v("v_mul_lo_u32", b, b, sT2)
            for iu in range(2):
                st.v("v_xor_b32", a, 4 * iu, ps); st.v("v_lshlrev_b32", a, 4, a)
                st.v("v_add_u32", vDG[iu][0], a, b); st.v("v_add_u32", vDG[iu][1], 32 * 2752, vDG[iu][0])
            self.lane_bits(st)
            self.addr128(st, vA, [0, 1, 2], 8)
            a, t = V(12), V(13)
            self.cc_part(st, a, t)
            st.v("v_lshlrev_b32", t, 3, self.b_hf); st.v("v_add_u32", t, t, self.b_r); st.v("v_lshlrev_b32", t, 7, t); st.v("v_add_u32", a, a, t)
            st.v("v_lshlrev_b32", t, 13, self.b_g); st.v("v_add_u32", a, a, t)
            st.v("v_bfe_u32", V(14), self.b_r, 1, 1); st.v("v_lshlrev_b32", t, 1, self.b_g); st.v("v_xor_b32", V(14), V(14), t)
            for c in range(4):
                st.v("v_xor_b32", t, c, V(14)); st.v("v_lshlrev_b32", t, 5, t)
                st.v("v_add_u32", vGU[c][0], a, t); st.v("v_add_u32", vGU[c][1], 65536, vGU[c][0])
            hi, lo = V(12), V(13)
            st.v("v_and_b32", lo, 1, self.b_cc); st.v("v_lshlrev_b32", lo, 3, lo)
            st.v("v_lshrrev_b32", V(15), 1, self.b_r)
            st.v("v_lshrrev_b32", V(16), 1, self.b_cc)
            st.s("s_lshl_b32", sT1, sWave, 13)
            st.s("s_lshr_b32", sT2, sWave, 1); st.s("s_mul_i32", sT2, sT2, 8704); st.s("s_add_u32", sT2, sT2, VB)
            st.s("s_and_b32", sT3, sWave, 1); st.s("s_lshl_b32", sT3, sT3, 1)
            for q in range(2):
                st.v("v_lshlrev_b32", hi, 3, self.b_hf); st.v("v_add_u32", hi, hi, self.b_r); st.v("v_add_u32", hi, 4 * q, hi)
                st.v("v_lshlrev_b32", hi, 6, hi); st.v("v_add_u32", hi, hi, lo)
                st.v("v_add_u32", V(17), 2 * q, V(15))
                st.v("v_lshlrev_b32", V(18), 1, self.b_g); st.v("v_add_u32", V(18), V(18), V(16)); st.v("v_xor_b32", V(18), V(18), V(17))
                st.v("v_lshlrev_b32", V(18), 4, V(18)); st.v("v_add_u32", V(18), V(18), hi)
                st.v("v_add_u32", V(18), sT1, V(18)); st.v("v_add_u32", vKr[q], PHI, V(18))
                st.v("v_add_u32", V(18), sT3, V(16)); st.v("v_xor_b32", V(18), V(18), V(17))
                st.v("v_lshlrev_b32", V(18), 4, V(18)); st.v("v_add_u32", V(18), V(18), hi)
                st.v("v_lshlrev_b32", V(19), 3, self.b_cc); st.v("v_add_u32", V(19), 1024, V(19))
                st.v("v_cmp_eq_u32", VCC, 0, self.b_g)
                st.v("v_cndmask_b32", V(18), V(19), V(18))
                st.v("v_add_u32", vVr[q], sT2, V(18))
            tk, sw = V(12), V(13)
            st.v("v_and_b32", tk, 31, vL); st.v("v_bfe_u32", sw, tk, 1, 2)
            st.v("v_lshlrev_b32", sw, 4, sw); st.v("v_lshlrev_b32", V(14), 3, self.b_hf)
            st.s("s_lshl_b32", sT1, sWave, 11)
            st.v("v_lshlrev_b32", V(15), 6, tk); st.v("v_add_u32", V(15), sT1, V(15)); st.v("v_add_u32", V(15), V(15), V(14))
            self.vKw = [V(225 + i) for i in range(4)]; self.vVw = [V(229 + i) for i in range(4)]
            st.v("v_lshrrev_b32", V(16), 4, tk); st.s("s_lshl_b32", sT2, sWave, 1); st.v("v_add_u32", V(16), sT2, V(16))
            st.s("s_mov_b32", sT3, 1088); st.v("v_mul_lo_u32", V(16), V(16), sT3)
            st.v("v_and_b32", V(17), 15, tk); st.v("v_lshlrev_b32", V(17), 6, V(17)); st.v("v_add_u32", V(16), V(16), V(17)); st.v("v_add_u32", V(16), V(16), V(14))
            for pc in range(4):
                st.v("v_xor_b32", V(17), pc << 4, sw)
                st.v("v_add_u32", V(18), V(15), V(17)); st.v("v_add_u32", self.vKw[pc], PHI, V(18))
                st.v("v_add_u32", V(18), V(16), V(17)); st.v("v_add_u32", self.vVw[pc], VB, V(18))
            st.v("v_lshrrev_b32", V(15), 5, vL); st.s("s_mov_b32", sT3, 8704); st.v("v_mul_lo_u32", V(15), V(15), sT3)
            st.v("v_bfe_u32", V(16), vL, 4, 1); st.v("v_add_u32", V(16), sT2, V(16)); st.s("s_mov_b32", sT3, 1088); st.v("v_mul_lo_u32", V(16), V(16), sT3)
            st.v("v_and_b32", V(17), 15, vL); st.v("v_lshlrev_b32", V(17), 2, V(17))
            st.v("v_add_u32", V(15), V(15), V(16)); st.v("v_add_u32", V(15), V(15), V(17)); st.v("v_add_u32", vOw, VB + 1024, V(15))
            self.p2_setup(st)
        self.startup(setup)
        def gstage(s, lds):
            x = Stream()
            x.s("s_add_u32", sSo, sColG, s * 64 * 2752)
            for ii in range(2):
                for iu in range(2):
                    x.s("s_add_u32", M0, sWl, lds + iu * 8192 + ii * 4096)
                    x.dma(vDG[iu][ii], rU if iu else rG, sSo, tag=f"G{s}")
            return Stage(f"G{s}", x.ops, f"G{s}")
        klds = [R[4], R[4] + 8192, R[4] + 16384, R[0], R[0] + 8192, R[0] + 16384, R[0] + 24576, R[4] + 24576]
        vlds = [R[1] + 8192 * s for s in range(8)]
        glds = [R[3], R[3] + 16384, R[0], R[0] + 16384, R[2], R[2] + 16384, R[3], R[3] + 16384]
        K = [self.stage128(f"K{s}", rQKV, sCol1, s * 64 * 3072, klds[s]) for s in range(8)]
        for s in range(3): K[s].tag = ("p1", s)
        Vs = [self.stage128(f"V{s}", rQKV, sColV, s * 64 * 3072, vlds[s]) for s in range(8)]
        G = [gstage(s, glds[s]) for s in range(8)]
        self.gate_add(st)
        pre = self.centering_gaps()
        items = []
        def pass128(stages, lds, acc):
            for s in range(8):
                for ks in range(4):
                    for c in range(2):
                        ad = lds[s] + ks * 16 * 128
                        rd = [(vA[c][(ad + q * 512) >> 16], (ad + q * 512) & 0xffff) for q in range(2)]
                        k = 4 * s + ks
                        items.append(Item(acc[16 * c:16 * c + 16], aX[4 * k:4 * k + 4], stages[s], rd, k == 0))
        pass128(K, klds, accK); nk = len(items)
        pass128(Vs, vlds, accV); nv = len(items)
        for s in range(8):
            for ks in range(4):
                for c in range(4):
                    ad = glds[s] + ks * 16 * 128
                    rd = [(vGU[c][(ad + q * 512) >> 16], (ad + q * 512) & 0xffff) for q in range(2)]
                    k = 4 * s + ks
                    items.append(Item(accG[16 * c:16 * c + 16], aX[4 * k:4 * k + 4], G[s], rd, k == 0))
        P = {i: self.p2_stage(i) for i in range(15)}
        pend = [(K[3], 0, 4), (K[4], None, 4), (K[5], None, 4), (K[6], None, 4)] + [(Vs[0], None, 3), (K[7], "K0", 3)]
        pend += [(Vs[s], None, 3) for s in range(1, 8)] + [(G[0], None, 3), (G[1], None, 3)]
        pend += [(G[2], "V0", 4), (G[3], "V0", 4), (G[4], "G1", 4), (G[5], "G1", 4), (G[6], "G2", 4), (G[7], "G3", 4),
                (P[0], "G5", 2), (P[1], "G5", 2), (P[4], "G7", 2), (P[5], "G7", 2)]
        gaps, off, bar = build_gaps(items, pend, pregaps=pre)
        nk += off; nv += off
        f = Stream()
        gi, gc = self.gate_check(f, V(198))
        for c in range(2): self.phi_logits(f, accK[16 * c:16 * c + 16], tmp8, c)
        def kwrite(hd):
            p = accK[8 * hd:8 * hd + 8]
            n0 = len(f.ops)
            f.dsw("ds_write_b64", self.vKw[0], p[4:6], off=hd * 8192); f.dsw("ds_write_b64", self.vKw[1], p[6:8], off=hd * 8192)
            f.dsw("ds_write_b64", self.vKw[2], p[0:2], off=hd * 8192); f.dsw("ds_write_b64", self.vKw[3], p[2:4], off=hd * 8192)
            return f.ops[n0:]
        for hd in range(2): self.softmax(f, accK[8 * hd:8 * hd + 8], T8, m6)
        for o in f.ops: o.after = nk
        n0 = len(f.ops)
        kwrite(0); kwrite(1)
        for hd in range(2, 4):
            self.softmax(f, accK[8 * hd:8 * hd + 8], T8, m6); kwrite(hd)
        for o in f.ops[n0:]: o.after = bar["V1"] + 1
        n0 = len(f.ops)
        f.v("v_mov_b32", tmp8[0], 0x3f803f80); f.dsw("ds_write_b32", vOw, tmp8[0])
        for c in range(2):
            a = accV[16 * c:16 * c + 16]
            for r in range(16): f.v("v_mul_f32", a[r], a[r], self.vRstd)
            for q in range(8): f.v("v_cvt_pk_bf16_f32", tmp8[q], a[2 * q], a[2 * q + 1])
            for pc in range(4): f.dsw("ds_write_b64", self.vVw[pc], tmp8[2 * pc:2 * pc + 2], off=c * 8704)
        f.waitlds(); f.barrier()
        fr = A(176, 32)
        def kvreads(ks):
            b = fr[8 * (ks & 3):8 * (ks & 3) + 8]
            for q in range(2): f.dsr("ds_read_b64_tr_b16", b[2 * q:2 * q + 2], vKr[q], off=ks * 1024)
            for q in range(2): f.dsr("ds_read_b64_tr_b16", b[4 + 2 * q:4 + 2 * q + 2], vVr[q], off=ks * 1088)
        for ks in range(3): kvreads(ks)
        for ks in range(8):
            if ks + 3 < 8: kvreads(ks + 3)
            b = fr[8 * (ks & 3):8 * (ks & 3) + 8]
            f.mfma(kvD, b[0:4], b[4:8], kvD if ks else 0)
        f.add(Block(gc, 4))
        f.s("s_lshl_b32", sT1, sJ, 2); f.s("s_add_u32", sT1, sT1, sWave); f.s("s_lshl_b32", sT1, sT1, 12); f.s("s_add_u32", sKVb, sT1, WS_KV)
        f.v("v_lshlrev_b32", tmp8[0], 2, V(1))
        for r in range(16):
            f.add(Op(f"buffer_atomic_add_f32 {kvD[r]}, {tmp8[0]}, {rWS}, {sKVb} offen offset:{r * 256}", "vst", [],
                     kvD[r].regs() + tmp8[0].regs() + rWS.regs() + sKVb.regs(), tag="kva"))
        self.stamp(f, 7, block=True)
        f.waitlds(); f.barrier()
        for i in (8, 2, 3):
            for grp in split_dma(self.p2_stage(i, sSo3).dma_ops): f.add(Block(grp, len(grp)))
        f.add(Delay(48))
        x = Stream()
        x.waitvm("kva"); x.barrier()
        x.s("s_lshl_b32", sT2, sJ, 7); x.s("s_add_u32", sT2, sT2, WS_FL + FL_KV)
        self.flag_add(x, sT2)
        f.add(Block(x.ops, 5))
        for o in f.ops[n0:]: o.after = max(o.after, nv)
        gaps[nk + 8].extend(gi)
        if self.prof:
            y = Stream(); self.stamp(y, 6); gaps[nk - 1].extend(y.ops)
        budgets = {nk - 1: KV_EXPOSED}
        out, left = interleave2(gaps, [f.ops], BUDGET, budgets)
        st.extend(out); st.extend(left[0])
        self.stamp(st, 8)
        st.barrier()
        self.gu_epilogue(st, accG, 4, T8)
        self.publish_h(st, [P[6], P[7]])

    def p2(self):
        st = self.st
        st.label("L_p2")
        accB = V(32, 32); accS = V(64, 32); X = V(96, 32); xr = V(128, 8); vR2t = V(136)
        vL = V(1)
        st.waitvm_all()
        st.s("s_lshl_b32", sT1, sWave, 8)
        st.v("v_lshlrev_b32", V(8), 2, vL); st.v("v_add_u32", V(9), sT1, V(8)); st.v("v_add_u32", V(9), MISC, V(9))
        st.dsw("ds_write_b32", V(9), self.vR2)
        st.s("s_lshl_b32", sT1, sRB, 7); st.s("s_lshl_b32", sT2, sHalf, 6); st.s("s_add_u32", sT1, sT1, sT2)
        st.s("s_lshl_b32", sT2, sI, 5); st.s("s_add_u32", sT1, sT1, sT2); st.s("s_lshl_b32", sT1, sT1, 10)
        st.s("s_lshl_b32", sT2, sC64, 7); st.s("s_add_u32", sT1, sT1, sT2); st.s("s_lshl_b32", sT2, sKh, 6); st.s("s_add_u32", sOutb, sT1, sT2)
        vXo = V(137); vOo = V(138)
        st.v("v_and_b32", V(10), 31, vL); st.v("v_lshlrev_b32", V(10), 10, V(10)); st.v("v_lshrrev_b32", V(11), 5, vL)
        st.v("v_lshlrev_b32", V(12), 3, V(11)); st.v("v_add_u32", vXo, V(10), V(12))
        st.v("v_lshlrev_b32", V(12), 4, V(11)); st.v("v_add_u32", vOo, V(10), V(12))
        for i in range(4): st.bload("buffer_load_dwordx2", xr[2 * i:2 * i + 2], vXo, rX, sOutb, off=16 * i)
        st.waitlds()
        st.s("s_lshl_b32", sT2, sRB, 7); st.s("s_add_u32", sT2, sT2, WS_FL + FL_H)
        self.stamp(st, 11)
        self.poll(st, sT2, 16, self.vZero, V(198))
        st.barrier()
        self.stamp(st, 12)
        st.s("s_lshl_b32", sT1, sHalf, 1); st.s("s_add_u32", sT1, sT1, sI); st.s("s_lshl_b32", sT1, sT1, 8)
        st.v("v_add_u32", V(9), sT1, V(8)); st.v("v_add_u32", V(9), MISC, V(9))
        st.dsr("ds_read_b32", vR2t, V(9))
        def bfrag(s): return aX[4 * (s % 32):4 * (s % 32) + 4]
        def bload(x, s):
            if s < 43:
                if s % 4 == 0: x.s("s_add_u32", sHb, sHl, s * 1024)
                x.bload("buffer_load_dwordx4", bfrag(s), self.vL16, rWS, sHb, off=(s % 4) * 1024, flags="sc1")
            else:
                sp = s - 43
                if sp % 4 == 0: x.s("s_add_u32", sOb, sOl, sp * 1024)
                x.bload("buffer_load_dwordx4", bfrag(s), self.vL16, rWS, sOb, off=(sp % 4) * 1024, flags="sc1")
        LOOK = 14
        for s in range(LOOK): bload(st, s)
        P = {i: self.p2_stage(i) for i in range(15)}
        for i in range(9): P[i].tag = "none"
        items = []
        for s in range(59):
            stn = s // 4 if s < 43 else 11 + (s - 43) // 4
            q4 = s % 4 if s < 43 else (s - 43) % 4
            for a in range(2):
                ad = (stn % 9) * 16384 + q4 * 2048
                rd = [(self.vP[a][(ad + q * 1024) >> 16], (ad + q * 1024) & 0xffff) for q in range(2)]
                acc = (accB if s < 43 else accS)[16 * a:16 * a + 16]
                items.append(Item(acc, bfrag(s), P[stn], rd, s == 0 or s == 43))
        OST = 8
        x = Stream()
        x.s("s_lshl_b32", sT2, sRB, 7); x.s("s_add_u32", sT2, sT2, WS_FL + FL_O)
        self.poll(x, sT2, 8, self.vZero, V(198))
        pend = [(P[9 + i], f"P{i + 2}", 2) for i in range(6)]
        gaps, off, bar = build_gaps(items, pend, pre_barrier={f"P{OST}": x.ops})
        for s in range(LOOK, 43):
            y = Stream(); bload(y, s); gaps[off + 2 * (s - LOOK) + 1].extend(y.ops)
        g0 = bar[f"P{OST}"] + 1
        gl = off + 2 * (43 - LOOK) + 1
        for k, s in enumerate(range(43, 59)):
            y = Stream(); bload(y, s)
            g = max(g0, gl); gl = g + 2
            assert g > off + 2 * (s - 32) + 1
            gaps[g].extend(y.ops)
        if self.prof:
            y = Stream(); self.stamp(y, 13); gaps[bar[f"P{OST}"]].extend(y.ops)
            y = Stream(); self.stamp(y, 14); gaps[off + 85].extend(y.ops)
        for g in gaps: st.extend(g)
        self.stamp(st, 15)
        st.s("s_lshl_b32", sT1, sWave, 13)
        st.v("v_add_u32", V(8), sT1, self.vL16)
        for q in range(4): st.dsw("ds_write_b128", V(8), accB[16 + 4 * q:16 + 4 * q + 4], off=q * 1024)
        for q in range(4): st.dsw("ds_write_b128", V(8), accS[16 + 4 * q:16 + 4 * q + 4], off=4096 + q * 1024)
        st.waitlds(); st.barrier()
        st.s("s_xor_b32", sT1, sWave, 2); st.s("s_lshl_b32", sT1, sT1, 13)
        st.v("v_add_u32", V(8), sT1, self.vL16)
        for q in range(8): st.dsr("ds_read_b128", X[4 * q:4 * q + 4], V(8), off=q * 1024)
        T = V(140, 16); U = V(156, 16); Y = V(172, 8)
        B = accB[0:16]; Sx = accS[0:16]
        st.v("v_mul_f32", V(139), -LOG2E, vR2t)
        for r in range(16): st.v("v_add_f32", B[r], B[r], X[r])
        for r in range(16): st.v("v_mul_f32", T[r], B[r], V(139))
        for r in range(16): st.v("v_exp_f32", T[r], T[r])
        for r in range(16): st.v("v_add_f32", Sx[r], Sx[r], X[16 + r])
        for r in range(16): st.v("v_add_f32", T[r], 1.0, T[r])
        for r in range(16): st.v("v_rcp_f32", T[r], T[r])
        for r in range(16): st.v("v_mul_f32", Sx[r], Sx[r], B[r])
        for r in range(16):
            i, j = r >> 2, r & 3
            src = xr[2 * i + (j >> 1)]
            if j & 1: st.v("v_and_b32", U[r], 0xffff0000, src)
            else: st.v("v_lshlrev_b32", U[r], 16, src)
        for r in range(16): st.v("v_mul_f32", Sx[r], Sx[r], T[r])
        for r in range(16): st.v("v_fma_f32", U[r], Sx[r], vR2t, U[r])
        for q in range(8): st.v("v_cvt_pk_bf16_f32", Y[q], U[2 * q], U[2 * q + 1])
        for p in range(2):
            st.swap32(Y[4 * p], Y[4 * p + 2]); st.swap32(Y[4 * p + 1], Y[4 * p + 3])
            st.bstore("buffer_store_dwordx4", Y[4 * p:4 * p + 4], vOo, rOUT, sOutb, off=32 * p)
        st.waitvm_all()
        if self.prof:
            self.stamp(st, 16)
            st.s("s_lshl_b32", sT1, sWG, 2); st.s("s_add_u32", sT1, sT1, sWave); st.s("s_lshl_b32", sT1, sT1, 8); st.s("s_add_u32", sT1, sT1, WS_ST)
            st.v("v_lshlrev_b32", V(8), 2, V(1))
            st.bstore("buffer_store_dword", V(253), V(8), rWS, sT1)
            st.waitvm_all()

    def build(self):
        st = self.st
        self.head()
        st.cmp("s_cmp_eq_u32", sType, 0); st.branch("s_cbranch_scc1", "L_kvpath")
        self.q_path()
        st.branch("s_branch", "L_p2")
        head = st
        self.st = st = Stream()
        self.kv_path()
        kv = st
        self.st = st = Stream()
        self.p2()
        p2 = st
        return finalize(head), finalize(kv), finalize(p2)

    def text(self):
        q, kv, p2 = self.build()
        hdr = [
            "; Fused Hedgehog linear attention + ReGLU kernel (generated by my own generator script)",
            "; @launch grid=(256,1,1) block=(256,1,1) lds=163840",
            '.amdgcn_target "amdgcn-amd-amdhsa--gfx950"', ".text", f".globl {KNAME}", ".p2align 8",
            f".type {KNAME},@function", f"{KNAME}:"]
        tail = ["L_end:", "s_endpgm", "L_codeend:", '.section .rodata,"a"', ".p2align 6", f".amdhsa_kernel {KNAME}",
                "  .amdhsa_next_free_vgpr 512", "  .amdhsa_next_free_sgpr 102", "  .amdhsa_accum_offset 256",
                "  .amdhsa_group_segment_fixed_size 0", "  .amdhsa_kernarg_size 88", "  .amdhsa_user_sgpr_count 2",
                "  .amdhsa_user_sgpr_kernarg_segment_ptr 1", "  .amdhsa_system_sgpr_workgroup_id_x 1", ".end_amdhsa_kernel"]
        return "\n".join(hdr) + "\n" + to_text(q) + to_text(kv) + to_text(p2) + "\n".join(tail) + "\n"

if __name__ == "__main__":
    out = sys.argv[1] if len(sys.argv) > 1 else "main.s"
    g = Main(prof=("prof" in sys.argv))
    t = g.text()
    open(out, "w").write(t)
    print("wrote", out, len(t), "bytes,", t.count("\n"), "lines")
```
